```python
import torch

def _softmax(x, axis=-1):
    return torch.softmax(x, dim=axis)
def _gelu(x):
    return torch.nn.functional.gelu(x, approximate="tanh")
def _silu(x):
    return torch.nn.functional.silu(x)
def _sigmoid(x):
    return torch.sigmoid(x)
def _layernorm(x, axis=-1, eps=1e-5):
    m = x.mean(dim=axis, keepdim=True)
    v = x.var(dim=axis, keepdim=True, unbiased=False)
    return (x - m) / torch.sqrt(v + eps)
def _scatter_add(tgt, idx, src, axis=0):
    return tgt.clone().index_add_(axis, idx, src)
def _segment_sum(src, seg, n):
    out = torch.zeros((n,) + src.shape[1:], dtype=src.dtype)
    return out.index_add_(0, seg, src)
def _pad(x, pw):
    flat = tuple(v for pair in reversed(pw) for v in pair)
    return torch.nn.functional.pad(x, flat)

kernel_name = 'concat_heads__compressed_kv_cla__compressed_kv_cla__decode'

def setup_inputs():

    _w = (lambda a: (lambda t: t.to(torch.bfloat16) if t.is_floating_point() else t)(torch.as_tensor(a)))
    def _A_setup():
        B, H, Sq, Sk, D, M = 2, 16, 1, 4096, 256, 448
        Dc = 4 * D
        return {
            "x": _w((lambda *s: torch.randn(*s, dtype=torch.bfloat16) * 3.2)(B, Sq, M)),
            "c_kv": _w((lambda *s: torch.randn(*s, dtype=torch.bfloat16) * 0.05)(B, Sk, Dc)),
            "w_q": _w((lambda *s: torch.randn(*s, dtype=torch.bfloat16) * 3.2)(M, H, D) * (M ** -0.5)),
            "w_uk": _w((lambda *s: torch.randn(*s, dtype=torch.bfloat16) * 3.2)(Dc, H, D) * (Dc ** -0.5)),
            "w_uv": _w((lambda *s: torch.randn(*s, dtype=torch.bfloat16) * 0.05)(Dc, H, D) * (Dc ** -0.5)),
            "w_o": _w((lambda *s: torch.randn(*s, dtype=torch.bfloat16) * 0.05)(H, D, M) * ((H * D) ** -0.5)),
        }
    _A_in = _A_setup()

    def _B_setup():
        B, H, Sq, Sk, D, M = 2, 16, 1, 4096, 256, 448
        Dc = 4 * D
        return {
            "x": _w((lambda *s: torch.randn(*s, dtype=torch.bfloat16) * 3.2)(B, Sq, M)),
            "c_kv": _w((lambda *s: torch.randn(*s, dtype=torch.bfloat16) * 0.05)(B, Sk, Dc)),
            "w_q": _w((lambda *s: torch.randn(*s, dtype=torch.bfloat16) * 3.2)(M, H, D) * (M ** -0.5)),
            "w_uk": _w((lambda *s: torch.randn(*s, dtype=torch.bfloat16) * 3.2)(Dc, H, D) * (Dc ** -0.5)),
            "w_uv": _w((lambda *s: torch.randn(*s, dtype=torch.bfloat16) * 0.05)(Dc, H, D) * (Dc ** -0.5)),
            "w_o": _w((lambda *s: torch.randn(*s, dtype=torch.bfloat16) * 0.05)(H, D, M) * ((H * D) ** -0.5)),
        }
    _B_in = _B_setup()

    return {
        "A_x": _A_in["x"],
        "A_c_kv": _A_in["c_kv"],
        "A_w_q": _A_in["w_q"],
        "A_w_uk": _A_in["w_uk"],
        "A_w_uv": _A_in["w_uv"],
        "A_w_o": _A_in["w_o"],
        "B_x": _B_in["x"],
        "B_c_kv": _B_in["c_kv"],
        "B_w_q": _B_in["w_q"],
        "B_w_uk": _B_in["w_uk"],
        "B_w_uv": _B_in["w_uv"],
        "B_w_o": _B_in["w_o"],
    }

def reference(A_x, A_c_kv, A_w_q, A_w_uk, A_w_uv, A_w_o, B_x, B_c_kv, B_w_q, B_w_uk, B_w_uv, B_w_o):
    def _A_ref(x, c_kv, w_q, w_uk, w_uv, w_o):
        B, Sq, M = x.shape[0], x.shape[1], x.shape[2]
        Sk = c_kv.shape[1]
        H, D = w_q.shape[1], w_q.shape[2]
        q = torch.einsum("bqm,mhd->bhqd", x, w_q)
        k = torch.einsum("bkc,chd->bhkd", c_kv, w_uk)
        v = torch.einsum("bkc,chd->bhkd", c_kv, w_uv)
        scores = torch.einsum("bhqd,bhkd->bhqk", q, k) * (D ** -0.5)
        off = Sk - Sq
        qi = torch.arange(Sq)[:, None]
        kj = torch.arange(Sk)[None, :]
        cmask = kj <= (qi + off)
        scores = torch.where(cmask[None, None], scores, -1e9)
        p = _softmax(scores, axis=-1)
        ctx = torch.einsum("bhqk,bhkd->bhqd", p, v)
        return torch.einsum("bhqd,hdm->bqm", ctx, w_o)

    def _B_ref(x, c_kv, w_q, w_uk, w_uv, w_o):
        B, Sq, M = x.shape[0], x.shape[1], x.shape[2]
        Sk = c_kv.shape[1]
        H, D = w_q.shape[1], w_q.shape[2]
        q = torch.einsum("bqm,mhd->bhqd", x, w_q)
        k = torch.einsum("bkc,chd->bhkd", c_kv, w_uk)
        v = torch.einsum("bkc,chd->bhkd", c_kv, w_uv)
        scores = torch.einsum("bhqd,bhkd->bhqk", q, k) * (D ** -0.5)
        off = Sk - Sq
        qi = torch.arange(Sq)[:, None]
        kj = torch.arange(Sk)[None, :]
        cmask = kj <= (qi + off)
        scores = torch.where(cmask[None, None], scores, -1e9)
        p = _softmax(scores, axis=-1)
        ctx = torch.einsum("bhqk,bhkd->bhqd", p, v)
        return torch.einsum("bhqd,hdm->bqm", ctx, w_o)

    a = _A_ref(A_x, A_c_kv, A_w_q, A_w_uk, A_w_uv, A_w_o)
    b = _B_ref(B_x, B_c_kv, B_w_q, B_w_uk, B_w_uv, B_w_o)
    return torch.concatenate([a, b], axis=-1)
```

```python
KN = "concat_heads__compressed_kv_cla__compressed_kv_cla__decode"
HEADER = open("cdna_kernels/" + KN + ".s.ref").read().split("; Override launch")[0]

def kd(name, vgpr, sgpr=102, accum=None):
    if accum is None:
        accum = min(256, (vgpr + 3) // 4 * 4)
    return f""".section .rodata,"a"
.p2align 6
.amdhsa_kernel {name}
  .amdhsa_next_free_vgpr {vgpr}
  .amdhsa_next_free_sgpr {sgpr}
  .amdhsa_accum_offset {accum}
  .amdhsa_group_segment_fixed_size 0
  .amdhsa_kernarg_size 120
  .amdhsa_user_sgpr_count 2
  .amdhsa_user_sgpr_kernarg_segment_ptr 1
  .amdhsa_system_sgpr_workgroup_id_x 1
.end_amdhsa_kernel
"""

def single(body, grid, block, lds, vgpr, sgpr=102, accum=None):
    name = KN + "_kernel"
    return (HEADER + f"; @launch grid=({grid},1,1) block=({block},1,1) lds={lds}\n"
            + '.amdgcn_target "amdgcn-amd-amdhsa--gfx950"\n.text\n'
            + f".globl {name}\n.p2align 8\n.type {name},@function\n{name}:\n" + body + "\ns_endpgm\n" + kd(name, vgpr, sgpr, accum))

def multi(kernels):
    s = HEADER
    for k in kernels:
        s += f"; @launch kernel={k[0]} grid=({k[2]},1,1) block=({k[3]},1,1) lds={k[4]}\n"
    s += '.amdgcn_target "amdgcn-amd-amdhsa--gfx950"\n.text\n'
    seen = set()
    for k in kernels:
        if k[0] in seen: continue
        seen.add(k[0])
        s += f".text\n.globl {k[0]}\n.p2align 8\n.type {k[0]},@function\n{k[0]}:\n" + k[1] + "\ns_endpgm\n"
    seen = set()
    for k in kernels:
        if k[0] in seen: continue
        seen.add(k[0])
        s += kd(k[0], k[5], k[6] if len(k) > 6 else 102, k[7] if len(k) > 7 else None)
    return s
```

```python
import sys
from asmlib import *

class E:
    def __init__(s):
        s.l = []
        s.lab = 0
    def __call__(s, t):
        s.l.append(t)
    def label(s, p="L"):
        s.lab += 1
        return f"{p}_{s.lab}"
    def text(s):
        return "\n".join(s.l)

QA_OFF = 0
INBOX_OFF = 1 << 20
OUTB_OFF = 20 << 20
STAMP_OFF = 32 << 20

R1 = 131072
QP_L = R1
QV_L = R1 + 16384
SP_L = R1
AL_L = 0
OP_L = 4096
CP_L = 16384
OPP_L = 32768

sW, sP, sH, sJ, sB, sKB, sU = 3, 4, 5, 6, 7, 8, 9
SX, SCKV, SWQ, SWUK, SWUV, SWO, SOUT, SDBG, SWS = 12, 16, 20, 24, 28, 32, 36, 40, 44
def srd(r): return f"s[{r}:{r+3}]"
vL, vN, vK = 1, 2, 3
vSEL = 4
vT = 12
vX = 20

def vr(a, n): return f"v[{a}:{a+n-1}]"

def gen(X=4, Y=8, WO1=16, stamps=False, timeout=200000, nopoison=False, noredund=False):
    e = E()
    A = e
    nst = [0]
    def stamp(idx):
        if not stamps: return
        A(f"s_memrealtime s[70:71]")
        A("s_waitcnt lgkmcnt(0)")
        A(f"s_mov_b32 s{72+idx}, s70")

    A("s_cmp_ge_u32 s2, 256")
    A("s_cbranch_scc1 L_end")
    stamp(0)
    A("s_and_b32 s48, s2, 7")
    A("s_lshr_b32 s49, s2, 6")
    A("s_lshl_b32 s50, s48, 2")
    A("s_add_u32 s50, s50, s49")
    A(f"s_lshr_b32 s{sP}, s50, 4")
    A(f"s_and_b32 s{sH}, s50, 15")
    A("s_lshr_b32 s51, s2, 3")
    A(f"s_and_b32 s{sJ}, s51, 7")
    A(f"s_lshl_b32 s{sU}, s{sH}, 3")
    A(f"s_add_u32 s{sU}, s{sU}, s{sJ}")
    A(f"s_lshr_b32 s{sB}, s{sU}, 6")
    A(f"s_and_b32 s{sKB}, s{sU}, 63")
    A(f"s_mul_i32 s10, s{sP}, 48")
    for r, off in ((SX, 0), (SCKV, 8), (SWQ, 16), (SWUK, 24), (SWUV, 32), (SWO, 40)):
        A(f"s_load_dwordx2 s[{r}:{r+1}], s[0:1], s10 offset:{off}")
    A(f"s_load_dwordx2 s[{SOUT}:{SOUT+1}], s[0:1], 96")
    A(f"s_load_dwordx2 s[{SDBG}:{SDBG+1}], s[0:1], 104")
    A(f"s_load_dwordx2 s[{SWS}:{SWS+1}], s[0:1], 112")
    A(f"v_and_b32 v{vL}, 63, v0")
    A(f"v_and_b32 v{vN}, 15, v0")
    A(f"v_bfe_u32 v{vK}, v0, 4, 2")
    A(f"v_lshrrev_b32 v{vT}, 6, v0")
    A("s_nop 0")
    A(f"v_readfirstlane_b32 s{sW}, v{vT}")
    for r, sz in ((SX, 1792), (SCKV, 16777216), (SWQ, 3670016), (SWUK, 8388608), (SWUV, 8388608), (SWO, 3670016),
                  (SOUT, 3584), (SDBG, 256), (SWS, 268435456)):
        A(f"s_mov_b32 s{r+2}, {sz}")
        A(f"s_mov_b32 s{r+3}, 0x00020000")
    A(f"v_and_b32 v{vT}, 1, v{vN}")
    A(f"v_bfe_u32 v{vT+1}, v{vN}, 1, 2")
    A(f"v_cmp_eq_u32 vcc, 1, v{vT}")
    for tp in range(2):
        lo = 0x0C0C0000 | ((2*tp+1) << 8) | (2*tp)
        hi = ((2*tp+1) << 24) | ((2*tp) << 16) | 0x0C0C
        A(f"v_mov_b32 v{vT+2}, 0x{lo:08x}")
        A(f"v_mov_b32 v{vT+3}, 0x{hi:08x}")
        A(f"v_cndmask_b32 v{vT+4+tp}, v{vT+2}, v{vT+3}, vcc")
    A(f"v_mov_b32 v{vT+2}, 0x0c0c0c0c")
    for p in range(4):
        A(f"v_cmp_eq_u32 vcc, {p}, v{vT+1}")
        A("s_nop 1")
        for tp in range(2):
            A(f"v_cndmask_b32 v{vSEL+4*tp+p}, v{vT+2}, v{vT+4+tp}, vcc")
    for i in range(4):
        A(f"v_mov_b32 v{28+i}, -1")
    A(f"v_lshlrev_b32 v{vT}, 4, v{vL}")
    A("s_waitcnt lgkmcnt(0)")
    A(f"s_lshl_b32 s52, s{sP}, 7")
    A(f"s_add_u32 s52, s52, s{sU}")
    A("s_lshl_b32 s52, s52, 16")
    A(f"s_add_u32 s52, s52, {INBOX_OFF}")
    lq = e.label("L_noqap")
    A("s_cmp_ge_u32 s2, 64")
    A(f"s_cbranch_scc1 {lq}")
    A(f"s_cmp_lg_u32 s{sW}, 7")
    A(f"s_cbranch_scc1 {lq}")
    A("s_lshl_b32 s53, s2, 11")
    A(f"buffer_store_dwordx4 v[28:31], v{vT}, {srd(SWS)}, s53 offen sc1")
    A(f"buffer_store_dwordx4 v[28:31], v{vT}, {srd(SWS)}, s53 offen offset:1024 sc1")
    A("s_waitcnt vmcnt(0)")
    A("s_lshl_b32 s53, s2, 2")
    A(f"v_mov_b32 v{vT+1}, 1")
    A(f"v_mov_b32 v{vT+2}, 0")
    A(f"v_cmp_eq_u32 vcc, 0, v{vL}")
    A("s_and_saveexec_b64 s[54:55], vcc")
    A(f"buffer_store_dword v{vT+1}, v{vT+2}, {srd(SDBG)}, s53 offen sc1")
    A("s_mov_b64 exec, s[54:55]")
    A(f"{lq}:")
    A(f"s_lshl_b32 s53, s{sW}, 12")
    A("s_add_u32 s53, s53, s52")
    for i in range(0 if nopoison else 4):
        A(f"buffer_store_dwordx4 v[28:31], v{vT}, {srd(SWS)}, s53 offen offset:{i*1024} sc1")
    l1 = e.label("L_nostat")
    A(f"s_cmp_lg_u32 s{sW}, 1")
    A(f"s_cbranch_scc1 {l1}")
    A("s_add_u32 s53, s52, 32768")
    A(f"buffer_store_dwordx4 v[28:31], v{vT}, {srd(SWS)}, s53 offen sc1")
    A(f"{l1}:")
    A(f"s_mul_i32 s56, s{sP}, 56")
    A(f"s_add_u32 s56, s56, s{sU}")
    A("s_lshl_b32 s56, s56, 13")
    A(f"s_add_u32 s56, s56, {OUTB_OFF}")
    l2 = e.label("L_nooutb")
    A(f"s_cmp_ge_u32 s{sU}, 56")
    A(f"s_cbranch_scc1 {l2}")
    A(f"s_lshl_b32 s53, s{sW}, 10")
    A("s_add_u32 s53, s53, s56")
    A(f"buffer_store_dwordx4 v[28:31], v{vT}, {srd(SWS)}, s53 offen sc1")
    A(f"{l2}:")

    A(f"v_lshrrev_b32 v{vT+1}, 3, v{vN}")
    A(f"v_mul_u32_u24 v{vT+1}, 896, v{vT+1}")
    A(f"v_mad_u32_u24 v{vT+1}, v{vK}, 28, v{vT+1}")
    A(f"s_mul_i32 s53, s{sW}, 112")
    A(f"buffer_load_dwordx4 v[{vX}:{vX+3}], v{vT+1}, {srd(SX)}, s53 offen")
    A(f"buffer_load_dwordx3 v[{vX+4}:{vX+6}], v{vT+1}, {srd(SX)}, s53 offen offset:16")
    A(f"v_lshlrev_b32 v{vT+2}, 4, v{vN}")
    A(f"v_mov_b32 v{vT+3}, {14*8192}")
    A(f"v_mad_u32_u24 v{vT+3}, v{vK}, v{vT+3}, v{vT+2}")
    A(f"s_mul_i32 s53, s{sW}, {56*8192}")
    A(f"s_lshl_b32 s57, s{sH}, 9")
    A("s_add_u32 s53, s53, s57")
    WQ = 32
    def wq_load(t, dh):
        r = WQ + (2*t+dh)*4
        A(f"buffer_load_dwordx4 {vr(r,4)}, v{vT+3}, {srd(SWQ)}, s53 offen offset:{dh*256}")
    for t in range(14):
        if t > 0:
            A("s_add_u32 s53, s53, 8192")
        wq_load(t, 0); wq_load(t, 1)
        if t == 2:
            lb = e.label("L_nob0")
            A("s_cmp_ge_u32 s2, 64")
            A(f"s_cbranch_scc1 {lb}")
            A("s_barrier")
            A(f"{lb}:")
    WUK = 144
    A(f"v_lshlrev_b32 v{vT+4}, 13, v{vN}")
    A(f"v_lshl_add_u32 v{vT+4}, v{vK}, 4, v{vT+4}")
    A(f"s_lshl_b32 s53, s{sJ}, 3")
    A(f"s_add_u32 s53, s53, s{sW}")
    A("s_lshl_b32 s53, s53, 17")
    A("s_add_u32 s53, s53, s57")
    for ks in range(8):
        A(f"buffer_load_dwordx4 {vr(WUK+4*ks,4)}, v{vT+4}, {srd(SWUK)}, s53 offen offset:{ks*64}")
    A(f"v_lshlrev_b32 v{vT+5}, 2, v{vL}")
    A(f"buffer_load_dword v27, v{vT+5}, {srd(SDBG)}, 0 offen sc1")
    VC = 224
    for tt in range(4):
        A(f"v_add_u32 v{VC+tt}, {4*tt}, v{vK}")
        A(f"v_xor_b32 v{VC+tt}, v{VC+tt}, v{vN}")
        A(f"v_lshlrev_b32 v{VC+tt}, 4, v{VC+tt}")
        A(f"v_lshl_add_u32 v{VC+tt}, v{vK}, 11, v{VC+tt}")
    A(f"s_lshl_b32 s58, s{sB}, 23")
    A(f"s_lshl_b32 s53, s{sKB}, 17")
    A("s_add_u32 s58, s58, s53")
    A(f"s_lshl_b32 s53, s{sW}, 8")
    A("s_add_u32 s58, s58, s53")
    A(f"s_lshl_b32 s59, s{sW}, 14")
    def ckv_dma(t):
        A(f"s_add_u32 s53, s59, {t*1024}")
        A("s_mov_b32 m0, s53")
        A(f"s_add_u32 s60, s58, {t*4*2048}")
        A(f"buffer_load_dwordx4 v{VC+(t&3)}, {srd(SCKV)}, s60 offen lds")
    for t in range(X):
        ckv_dma(t)
    stamp(1)
    ACC = 176
    AOP = 184
    younger = 8 + 1 + X
    def build_A(dst, xreg, tp):
        for p in range(4):
            A(f"v_perm_b32 v{dst+p}, v{xreg}, v{xreg}, v{vSEL+4*tp+p}")
    A(f"s_waitcnt vmcnt({27 + younger})")
    build_A(AOP, vX, 0)
    for t in range(14):
        a = AOP + 4*(t & 1)
        if t < 13:
            build_A(AOP + 4*((t+1) & 1), vX + ((t+1) >> 1), (t+1) & 1)
        else:
            A("s_nop 1")
        for dh in range(2):
            idx = 2*t + dh
            A(f"s_waitcnt vmcnt({27 - idx + younger})")
            c = "0" if t == 0 else vr(ACC+4*dh, 4)
            A(f"v_mfma_f32_16x16x32_bf16 {vr(ACC+4*dh,4)}, {vr(a,4)}, {vr(WQ+4*idx,4)}, {c}")
    A(f"v_lshrrev_b32 v{vT+5}, 1, v{vK}")
    A(f"v_lshlrev_b32 v{vT+5}, 10, v{vT+5}")
    A(f"v_lshl_add_u32 v{vT+5}, v{vN}, 5, v{vT+5}")
    A(f"v_and_b32 v{vT+6}, 1, v{vK}")
    A(f"v_lshl_add_u32 v{vT+5}, v{vT+6}, 4, v{vT+5}")
    A(f"s_lshl_b32 s53, s{sW}, 11")
    A(f"s_add_u32 s53, s53, {QP_L}")
    A(f"v_add_u32 v{vT+6}, s53, v{vT+5}")
    A("s_nop 7")
    A(f"ds_write_b128 v{vT+6}, {vr(ACC,4)}")
    A(f"ds_write_b128 v{vT+6}, {vr(ACC+4,4)} offset:512")
    A("s_waitcnt lgkmcnt(0)")
    A("s_barrier")
    A(f"v_lshlrev_b32 v{vT+6}, 2, v0")
    A(f"v_add_u32 v{vT+6}, {QP_L}, v{vT+6}")
    for w2 in range(8):
        A(f"ds_read_b32 v{32+w2}, v{vT+6} offset:{w2*2048}")
    A("s_waitcnt lgkmcnt(0)")
    A("v_add_f32 v32, v32, v33"); A("v_add_f32 v34, v34, v35"); A("v_add_f32 v36, v36, v37"); A("v_add_f32 v38, v38, v39")
    A("v_add_f32 v32, v32, v34"); A("v_add_f32 v36, v36, v38"); A("v_add_f32 v32, v32, v36")
    A("v_cvt_pk_bf16_f32 v32, v32, v32")
    A(f"v_lshlrev_b32 v{vT+6}, 1, v0")
    A(f"v_add_u32 v{vT+6}, {QV_L}, v{vT+6}")
    A(f"ds_write_b16 v{vT+6}, v32")
    A("s_waitcnt lgkmcnt(0)")
    A("s_barrier")
    A(f"v_and_b32 v{vT+6}, 1, v{vN}")
    A(f"v_lshlrev_b32 v{vT+6}, 9, v{vT+6}")
    A(f"v_lshl_add_u32 v{vT+6}, v{vK}, 4, v{vT+6}")
    A(f"v_add_u32 v{vT+6}, {QV_L}, v{vT+6}")
    for ks in range(8):
        A(f"ds_read_b128 {vr(32+4*ks,4)}, v{vT+6} offset:{ks*64}")
    A("s_waitcnt lgkmcnt(0)")
    A("s_barrier")
    stamp(2)
    for ks in range(8):
        A(f"s_waitcnt vmcnt({7 - ks + 1 + X})")
        c = "0" if ks == 0 else vr(ACC, 4)
        A(f"v_mfma_f32_16x16x32_bf16 {vr(ACC,4)}, {vr(WUK+4*ks,4)}, {vr(32+4*ks,4)}, {c}")
    A(f"s_waitcnt vmcnt({X})")
    A(f"s_mov_b32 s61, {timeout}")
    lf = e.label("L_flag"); lfd = e.label("L_flagd")
    A(f"{lf}:")
    A("v_cmp_ne_u32 vcc, 0, v27")
    A("s_nop 1")
    A("s_cmp_eq_u64 vcc, -1")
    A(f"s_cbranch_scc1 {lfd}")
    A("s_sub_u32 s61, s61, 1")
    A("s_cmp_eq_u32 s61, 0")
    A(f"s_cbranch_scc1 {lfd}")
    A(f"v_lshlrev_b32 v{vT+6}, 2, v{vL}")
    A(f"buffer_load_dword v27, v{vT+6}, {srd(SDBG)}, 0 offen sc1")
    A("s_waitcnt vmcnt(0)")
    A(f"s_branch {lf}")
    A(f"{lfd}:")
    A("v_mov_b32 v32, 0x3db8aa3b")
    A("s_nop 7")
    for r in range(4):
        A(f"v_mul_f32 v{ACC+r}, v32, v{ACC+r}")
    A(f"v_cvt_pk_bf16_f32 v{ACC+4}, v{ACC}, v{ACC+1}")
    A(f"v_cvt_pk_bf16_f32 v{ACC+5}, v{ACC+2}, v{ACC+3}")
    A(f"v_lshlrev_b32 v{vT+6}, 15, v{vN}")
    A(f"v_lshl_add_u32 v{vT+6}, v{vK}, 3, v{vT+6}")
    A(f"s_lshl_b32 s53, s{sP}, 16")
    A(f"s_lshl_b32 s60, s{sH}, 11")
    A("s_add_u32 s53, s53, s60")
    A(f"s_lshl_b32 s60, s{sJ}, 8")
    A("s_add_u32 s53, s53, s60")
    A(f"s_lshl_b32 s60, s{sW}, 5")
    A("s_add_u32 s53, s53, s60")
    A(f"v_cmp_gt_u32 vcc, 2, v{vN}")
    A("s_and_saveexec_b64 s[54:55], vcc")
    A(f"buffer_store_dwordx2 {vr(ACC+4,2)}, v{vT+6}, {srd(SWS)}, s53 offen sc1")
    A("s_mov_b64 exec, s[54:55]")
    stamp(3)
    for t in range(X, 16):
        ckv_dma(t)
    QAr = 32
    A(f"v_lshlrev_b32 v{vT+6}, 11, v{vN}")
    A(f"v_lshl_add_u32 v{vT+6}, v{vK}, 4, v{vT+6}")
    A(f"s_lshl_b32 s62, s{sP}, 1")
    A(f"s_add_u32 s62, s62, s{sB}")
    A("s_lshl_b32 s62, s62, 15")
    A(f"s_lshl_b32 s53, s{sW}, 8")
    A("s_add_u32 s62, s62, s53")
    def qa_loads():
        for ks in range(4):
            A(f"buffer_load_dwordx4 {vr(QAr+4*ks,4)}, v{vT+6}, {srd(SWS)}, s62 offen offset:{ks*64} sc1")
    qa_loads()
    WUV = 224
    A(f"s_lshr_b32 s53, s{sW}, 1")
    A("s_and_b32 s53, s53, 1")
    A(f"v_xor_b32 v{vT+7}, s53, v{vK}")
    A(f"v_lshl_add_u32 v{vT+7}, v{vT+7}, 15, v{vT+2}")
    A(f"s_lshl_b32 s53, s{sJ}, 3")
    A(f"s_add_u32 s53, s53, s{sW}")
    A("s_lshl_b32 s53, s53, 17")
    A("s_add_u32 s53, s53, s57")
    for i in range(4):
        if i > 0:
            A("s_add_u32 s53, s53, 8192")
        for dh in range(2):
            A(f"buffer_load_dwordx4 {vr(WUV+(2*i+dh)*4,4)}, v{vT+7}, {srd(SWUV)}, s53 offen offset:{dh*256}")
    assert Y == 8
    for ks in range(4):
        A(f"v_add_u32 v{192+ks}, {4*ks}, v{vK}")
        A(f"v_xor_b32 v{192+ks}, v{192+ks}, v{vN}")
        A(f"v_lshlrev_b32 v{192+ks}, 4, v{192+ks}")
        A(f"v_lshl_add_u32 v{192+ks}, v{vN}, 8, v{192+ks}")
        A(f"v_add_u32 v{192+ks}, s59, v{192+ks}")
    A(f"v_lshrrev_b32 v196, 2, v{vN}")
    A(f"v_and_b32 v197, 3, v{vN}")
    A(f"v_lshl_add_u32 v198, v{vK}, 2, v196")
    A("v_lshlrev_b32 v198, 8, v198")
    A("v_add_u32 v198, s59, v198")
    A(f"v_xor_b32 v199, v197, v{vK}")
    A("v_lshl_add_u32 v198, v199, 6, v198")
    A("v_and_b32 v197, 1, v197")
    for t in range(8):
        tau, hb = t >> 1, t & 1
        A(f"v_xor_b32 v199, {tau}, v196")
        A(f"v_lshl_add_u32 v{200+t}, v199, 4, v198")
        A(f"v_xor_b32 v199, {hb}, v197")
        A(f"v_lshl_add_u32 v{200+t}, v199, 3, v{200+t}")
    A(f"s_waitcnt vmcnt({4+Y})")
    stamp(4)
    CA, CT = 48, 112
    for kt in range(4):
        for ks in range(4):
            A(f"ds_read_b128 {vr(CA+(kt*4+ks)*4,4)}, v{192+ks} offset:{kt*4096}")
    for t in range(8):
        for ks2 in range(2):
            for u in range(2):
                A(f"ds_read_b64_tr_b16 {vr(CT+(t*2+ks2)*4+2*u,2)}, v{200+t} offset:{(32*ks2+16*u)*256}")
    A(f"s_waitcnt vmcnt({Y})")
    A(f"s_mov_b32 s61, {timeout}")
    lp = e.label("L_qa"); lpd = e.label("L_qad")
    A(f"{lp}:")
    A(f"v_max3_u32 v{vT+5}, v{QAr}, v{QAr+1}, v{QAr+2}")
    for i in range(3, 15, 2):
        A(f"v_max3_u32 v{vT+5}, v{vT+5}, v{QAr+i}, v{QAr+i+1}")
    A(f"v_max_u32 v{vT+5}, v{vT+5}, v{QAr+15}")
    A(f"v_cmp_eq_u32 vcc, -1, v{vT+5}")
    A("s_nop 1")
    A("s_cmp_eq_u64 vcc, 0")
    A(f"s_cbranch_scc1 {lpd}")
    A("s_sub_u32 s61, s61, 1")
    A("s_cmp_eq_u32 s61, 0")
    A(f"s_cbranch_scc1 {lpd}")
    qa_loads()
    A("s_waitcnt vmcnt(0)")
    A(f"s_branch {lp}")
    A(f"{lpd}:")
    stamp(5)
    SA = 176
    A("s_waitcnt lgkmcnt(0)")
    for ks in range(4):
        for kt in range(4):
            c = "0" if ks == 0 else vr(SA+4*kt, 4)
            A(f"v_mfma_f32_16x16x32_bf16 {vr(SA+4*kt,4)}, {vr(CA+(kt*4+ks)*4,4)}, {vr(QAr+4*ks,4)}, {c}")
    A(f"s_lshl_b32 s53, s{sW}, 12")
    A(f"v_add_u32 v{vT+5}, s53, v{vT}")
    A(f"v_add_u32 v{vT+5}, {SP_L}, v{vT+5}")
    A("s_nop 7")
    for kt in range(4):
        A(f"ds_write_b128 v{vT+5}, {vr(SA+4*kt,4)} offset:{kt*1024}")
    A("s_waitcnt lgkmcnt(0)")
    A("s_barrier")
    A(f"s_lshr_b32 s53, s{sW}, 1")
    A("s_lshl_b32 s53, s53, 10")
    A(f"s_and_b32 s60, s{sW}, 1")
    A("s_lshl_b32 s60, s60, 3")
    A("s_add_u32 s53, s53, s60")
    A(f"s_add_u32 s53, s53, {SP_L}")
    A(f"v_add_u32 v{vT+5}, s53, v{vT}")
    for w2 in range(8):
        A(f"ds_read_b64 {vr(48+2*w2,2)}, v{vT+5} offset:{w2*4096}")
    A("s_waitcnt lgkmcnt(0)")
    A("v_pk_add_f32 v[48:49], v[48:49], v[50:51]"); A("v_pk_add_f32 v[52:53], v[52:53], v[54:55]")
    A("v_pk_add_f32 v[56:57], v[56:57], v[58:59]"); A("v_pk_add_f32 v[60:61], v[60:61], v[62:63]")
    A("v_pk_add_f32 v[48:49], v[48:49], v[52:53]"); A("v_pk_add_f32 v[56:57], v[56:57], v[60:61]")
    A("v_pk_add_f32 v[48:49], v[48:49], v[56:57]")
    A(f"ds_write_b64 v{vT+5}, v[48:49]")
    A("s_waitcnt lgkmcnt(0)")
    A("s_barrier")
    A(f"v_add_u32 v{vT+5}, {SP_L}, v{vT}")
    for kt in range(4):
        A(f"ds_read_b128 {vr(SA+4*kt,4)}, v{vT+5} offset:{kt*1024}")
    A("s_waitcnt lgkmcnt(0)")
    A(f"v_max3_f32 v48, v{SA}, v{SA+1}, v{SA+2}")
    for i in range(3, 15, 2):
        A(f"v_max3_f32 v48, v48, v{SA+i}, v{SA+i+1}")
    A(f"v_max_f32 v48, v48, v{SA+15}")
    A("v_mov_b32 v49, v48"); A("s_nop 1"); A("v_permlane32_swap_b32 v48, v49"); A("v_max_f32 v48, v48, v49")
    A("v_mov_b32 v49, v48"); A("s_nop 1"); A("v_permlane16_swap_b32 v48, v49"); A("v_max_f32 v48, v48, v49")
    for i in range(16):
        A(f"v_sub_f32 v{SA+i}, v{SA+i}, v48")
    for i in range(16):
        A(f"v_exp_f32 v{SA+i}, v{SA+i}")
    A("s_nop 0")
    for ks2 in range(2):
        for q in range(4):
            s = SA + 8*ks2 + 2*q
            A(f"v_cvt_pk_bf16_f32 v{52+4*ks2+q}, v{s}, v{s+1}")
    A(f"v_add_f32 v49, v{SA}, v{SA+1}")
    for i in range(2, 16):
        A(f"v_add_f32 v49, v49, v{SA+i}")
    OA = 192
    for t in range(8):
        A(f"v_mfma_f32_16x16x32_bf16 {vr(OA+4*t,4)}, {vr(CT+(t*2)*4,4)}, v[52:55], 0")
    for t in range(8):
        A(f"v_mfma_f32_16x16x32_bf16 {vr(OA+4*t,4)}, {vr(CT+(t*2+1)*4,4)}, v[56:59], {vr(OA+4*t,4)}")
    A("v_mov_b32 v50, v49"); A("s_nop 1"); A("v_permlane32_swap_b32 v49, v50"); A("v_add_f32 v49, v49, v50")
    A("v_mov_b32 v50, v49"); A("s_nop 1"); A("v_permlane16_swap_b32 v49, v50"); A("v_add_f32 v49, v49, v50")
    A(f"v_lshlrev_b32 v{vT+5}, 19, v{vN}")
    A(f"v_lshl_add_u32 v{vT+6}, v{vK}, 6, v{vT+5}")
    A(f"s_lshl_b32 s53, s{sP}, 7")
    A(f"s_add_u32 s53, s53, s{sW}")
    A("s_lshl_b32 s53, s53, 16")
    A(f"s_add_u32 s53, s53, {INBOX_OFF}")
    A(f"s_lshl_b32 s60, s{sU}, 8")
    A("s_add_u32 s63, s53, s60")
    A(f"s_lshl_b32 s60, s{sU}, 3")
    A("s_add_u32 s53, s53, s60")
    A("s_add_u32 s53, s53, 32768")
    A("s_nop 4")
    for tau in range(4):
        d = 60 + 4*tau
        a, b2 = OA + 8*tau, OA + 8*tau + 4
        A(f"v_cvt_pk_bf16_f32 v{d}, v{a}, v{a+1}")
        A(f"v_cvt_pk_bf16_f32 v{d+1}, v{a+2}, v{a+3}")
        A(f"v_cvt_pk_bf16_f32 v{d+2}, v{b2}, v{b2+1}")
        A(f"v_cvt_pk_bf16_f32 v{d+3}, v{b2+2}, v{b2+3}")
        A(f"buffer_store_dwordx4 {vr(d,4)}, v{vT+6}, {srd(SWS)}, s63 offen offset:{tau*16} sc1")
    A(f"v_cmp_eq_u32 vcc, 0, v{vK}")
    A("s_and_saveexec_b64 s[54:55], vcc")
    A(f"buffer_store_dwordx2 v[48:49], v{vT+5}, {srd(SWS)}, s53 offen sc1")
    A("s_mov_b64 exec, s[54:55]")
    stamp(6)
    WO = 80
    A(f"v_mov_b32 v{vT+5}, {8*896}")
    A(f"v_mad_u32_u24 v{vT+5}, v{vK}, v{vT+5}, v{vT+2}")
    A(f"s_lshl_b32 s53, s{sH}, 3")
    A(f"s_add_u32 s53, s53, s{sW}")
    A(f"s_mul_i32 s53, s53, {32*896}")
    A(f"v_cmp_gt_u32 s[64:65], 8, v{vN}")
    def wo_loads(i0, i1):
        for i in range(i0, i1):
            if i > 0:
                A("s_add_u32 s53, s53, 896")
            for cb in range(4):
                if cb == 3:
                    A("s_mov_b64 exec, s[64:65]")
                A(f"buffer_load_dwordx4 {vr(WO+(4*i+cb)*4,4)}, v{vT+5}, {srd(SWO)}, s53 offen offset:{cb*256}")
                if cb == 3:
                    A("s_mov_b64 exec, -1")
    n1 = WO1 // 4
    wo_loads(0, n1)
    IB = 32
    A(f"v_lshl_add_u32 v{vT+6}, v{vK}, 10, v{vT+2}")
    A(f"s_lshl_b32 s62, s{sW}, 12")
    A("s_add_u32 s62, s62, s52")
    A(f"v_lshlrev_b32 v{vT+7}, 3, v{vL}")
    A(f"s_lshr_b32 s63, s{sW}, 2")
    A("s_lshl_b32 s63, s63, 9")
    A("s_add_u32 s63, s63, s52")
    A("s_add_u32 s63, s63, 32768")
    def ib_loads():
        A(f"buffer_load_dwordx2 v[48:49], v{vT+7}, {srd(SWS)}, s63 offen sc1")
        for i in range(4):
            A(f"buffer_load_dwordx4 {vr(IB+4*i,4)}, v{vT+6}, {srd(SWS)}, s62 offen offset:{i*256} sc1")
    ib_loads()
    wo_loads(n1, 8)
    A(f"s_waitcnt vmcnt({32 - WO1})")
    A(f"s_mov_b32 s61, {timeout}")
    lp = e.label("L_ib"); lpd = e.label("L_ibd")
    A(f"{lp}:")
    A(f"v_max3_u32 v50, v{IB}, v{IB+1}, v{IB+2}")
    for i in range(3, 17, 2):
        A(f"v_max3_u32 v50, v50, v{IB+i}, v{IB+i+1}")
    A("v_max_u32 v50, v50, v49")
    A("v_cmp_eq_u32 vcc, -1, v50")
    A("s_nop 1")
    A("s_cmp_eq_u64 vcc, 0")
    A(f"s_cbranch_scc1 {lpd}")
    A("s_sub_u32 s61, s61, 1")
    A("s_cmp_eq_u32 s61, 0")
    A(f"s_cbranch_scc1 {lpd}")
    ib_loads()
    A("s_waitcnt vmcnt(0)")
    A(f"s_branch {lp}")
    A(f"{lpd}:")
    stamp(7)
    def wave_reduce(op, r, t):
        for dpp in ("quad_perm:[1,0,3,2]", "quad_perm:[2,3,0,1]", "row_half_mirror", "row_mirror"):
            A("s_nop 1")
            A(f"{op}_dpp v{r}, v{r}, v{r} {dpp} row_mask:0xf bank_mask:0xf")
        A(f"v_mov_b32 v{t}, v{r}"); A("s_nop 1"); A(f"v_permlane16_swap_b32 v{r}, v{t}"); A(f"{op} v{r}, v{r}, v{t}")
        A(f"v_mov_b32 v{t}, v{r}"); A("s_nop 1"); A(f"v_permlane32_swap_b32 v{r}, v{t}"); A(f"{op} v{r}, v{r}, v{t}")
    A("v_mov_b32 v50, v48")
    wave_reduce("v_max_f32", 50, 51)
    A("v_sub_f32 v48, v48, v50")
    A("v_exp_f32 v48, v48")
    A("s_nop 0")
    A("v_mul_f32 v49, v49, v48")
    wave_reduce("v_add_f32", 49, 51)
    A("v_rcp_f32 v49, v49")
    A("s_nop 0")
    A("v_mul_f32 v48, v48, v49")
    A(f"s_lshl_b32 s60, s{sW}, 8")
    A(f"v_lshlrev_b32 v50, 2, v{vL}")
    A("v_add_u32 v50, s60, v50")
    A(f"ds_write_b32 v50, v48 offset:{AL_L}")
    A(f"s_and_b32 s53, s{sW}, 3")
    A("s_lshl_b32 s53, s53, 6")
    A("s_add_u32 s60, s60, s53")
    A(f"v_lshlrev_b32 v50, 4, v{vK}")
    A("v_add_u32 v50, s60, v50")
    A("s_waitcnt lgkmcnt(0)")
    A(f"ds_read_b128 v[52:55], v50 offset:{AL_L}")
    A("s_waitcnt lgkmcnt(0)")
    A("v_cvt_pk_bf16_f32 v56, v52, v53")
    A("v_cvt_pk_bf16_f32 v57, v54, v55")
    A("v_lshlrev_b32 v58, 16, v56"); A("v_and_b32 v59, 0xffff0000, v56")
    A("v_lshlrev_b32 v60, 16, v57"); A("v_and_b32 v61, 0xffff0000, v57")
    A("v_sub_f32 v52, v52, v58"); A("v_sub_f32 v53, v53, v59"); A("v_sub_f32 v54, v54, v60"); A("v_sub_f32 v55, v55, v61")
    A("v_cvt_pk_bf16_f32 v58, v52, v53")
    A("v_cvt_pk_bf16_f32 v59, v54, v55")
    A(f"v_cmp_lt_u32 vcc, 7, v{vN}")
    A("s_nop 1")
    A("v_cndmask_b32 v56, v56, v58, vcc")
    A("v_cndmask_b32 v57, v57, v59, vcc")
    for i in range(4):
        build_A(60 + 4*i, 56 + (i >> 1), i & 1)
    A("s_nop 1")
    for i in range(4):
        c = "0" if i == 0 else "v[52:55]"
        A(f"v_mfma_f32_16x16x32_bf16 v[52:55], {vr(60+4*i,4)}, {vr(IB+4*i,4)}, {c}")
    A(f"v_lshrrev_b32 v50, 1, v{vK}")
    A("v_lshlrev_b32 v50, 9, v50")
    A(f"v_lshl_add_u32 v50, v{vN}, 5, v50")
    A(f"v_and_b32 v51, 1, v{vK}")
    A("v_lshl_add_u32 v50, v51, 4, v50")
    A(f"s_lshl_b32 s60, s{sW}, 10")
    A("v_add_u32 v50, s60, v50")
    A("s_nop 4")
    A(f"ds_write_b128 v50, v[52:55] offset:{OP_L}")
    A("s_waitcnt lgkmcnt(0)")
    A("s_barrier")
    A(f"v_lshrrev_b32 v19, 3, v{vN}")
    A("v_lshlrev_b32 v19, 12, v19")
    A(f"v_lshl_add_u32 v19, v{vK}, 4, v19")
    A(f"s_lshl_b32 s60, s{sW}, 6")
    A("v_add_u32 v19, s60, v19")
    for q in range(8):
        A(f"ds_read_b128 {vr(32+4*q,4)}, v19 offset:{OP_L+q*512}")
    A("s_waitcnt lgkmcnt(0)")
    def tree_sum4(base, n):
        step = 1
        while step < n:
            for q in range(0, n, 2*step):
                a, b2 = base + 4*q, base + 4*(q+step)
                A(f"v_pk_add_f32 {vr(a,2)}, {vr(a,2)}, {vr(b2,2)}")
                A(f"v_pk_add_f32 {vr(a+2,2)}, {vr(a+2,2)}, {vr(b2+2,2)}")
            step *= 2
    tree_sum4(32, 8)
    A("v_cvt_pk_bf16_f32 v56, v32, v33")
    A("v_cvt_pk_bf16_f32 v57, v34, v35")
    for i in range(4):
        build_A(60 + 4*i, 56 + (i >> 1), i & 1)
    A("s_nop 1")
    for i in range(4):
        for dh in range(2):
            c = "0" if i == 0 else vr(32+4*dh, 4)
            A(f"v_mfma_f32_16x16x32_bf16 {vr(32+4*dh,4)}, {vr(60+4*i,4)}, {vr(WUV+(2*i+dh)*4,4)}, {c}")
    A(f"v_lshrrev_b32 v50, 1, v{vK}")
    A("v_lshlrev_b32 v50, 10, v50")
    A(f"v_lshl_add_u32 v50, v{vN}, 5, v50")
    A(f"v_and_b32 v51, 1, v{vK}")
    A("v_lshl_add_u32 v50, v51, 4, v50")
    A(f"s_lshl_b32 s60, s{sW}, 11")
    A("v_add_u32 v50, s60, v50")
    A("s_nop 6")
    A(f"ds_write_b128 v50, v[32:35] offset:{CP_L}")
    A(f"ds_write_b128 v50, v[36:39] offset:{CP_L+512}")
    A("s_waitcnt lgkmcnt(0)")
    A("s_barrier")
    A(f"v_lshrrev_b32 v19, 3, v{vN}")
    A("v_lshlrev_b32 v19, 10, v19")
    A(f"v_lshl_add_u32 v19, v{vK}, 5, v19")
    A(f"s_lshl_b32 s60, s{sW}, 7")
    A("v_add_u32 v19, s60, v19")
    for w2 in range(8):
        A(f"ds_read_b128 {vr(32+4*w2,4)}, v19 offset:{CP_L+w2*2048}")
        A(f"ds_read_b128 {vr(208+4*w2,4)}, v19 offset:{CP_L+w2*2048+16}")
    A("s_waitcnt lgkmcnt(0)")
    tree_sum4(32, 8)
    tree_sum4(208, 8)
    A("v_cvt_pk_bf16_f32 v64, v32, v33")
    A("v_cvt_pk_bf16_f32 v65, v34, v35")
    A("v_cvt_pk_bf16_f32 v66, v208, v209")
    A("v_cvt_pk_bf16_f32 v67, v210, v211")
    for i in range(8):
        build_A(32 + 4*i, 64 + (i >> 1), i & 1)
    A("s_waitcnt vmcnt(0)")
    stamp(8)
    OC = 208
    for i in range(8):
        for cb in range(4):
            c = "0" if i == 0 else vr(OC+4*cb, 4)
            A(f"v_mfma_f32_16x16x32_bf16 {vr(OC+4*cb,4)}, {vr(32+4*i,4)}, {vr(WO+(4*i+cb)*4,4)}, {c}")
    A(f"v_lshrrev_b32 v50, 1, v{vK}")
    A("v_lshlrev_b32 v50, 11, v50")
    A(f"v_lshl_add_u32 v50, v{vN}, 5, v50")
    A(f"v_and_b32 v51, 1, v{vK}")
    A("v_lshl_add_u32 v50, v51, 4, v50")
    A(f"s_lshl_b32 s60, s{sW}, 12")
    A("v_add_u32 v50, s60, v50")
    A("s_nop 6")
    for cb in range(4):
        A(f"ds_write_b128 v50, {vr(OC+4*cb,4)} offset:{OPP_L+cb*512}")
    A("s_waitcnt lgkmcnt(0)")
    A("s_barrier")
    ldone = e.label("L_sum5d")
    A("v_cmp_gt_u32 vcc, 224, v0")
    A("s_and_saveexec_b64 s[54:55], vcc")
    A(f"s_cbranch_execz {ldone}")
    A("v_cmp_le_u32 vcc, 112, v0")
    A("s_nop 1")
    A("v_cndmask_b32 v50, 0, 1, vcc")
    A("v_mul_u32_u24 v51, 112, v50")
    A("v_sub_u32 v51, v0, v51")
    A("v_lshlrev_b32 v52, 11, v50")
    A("v_lshl_add_u32 v52, v51, 4, v52")
    for w2 in range(8):
        A(f"ds_read_b128 {vr(64+4*w2,4)}, v52 offset:{OPP_L+w2*4096}")
    A("s_waitcnt lgkmcnt(0)")
    tree_sum4(64, 8)
    A("v_lshrrev_b32 v52, 2, v0")
    A("v_lshlrev_b32 v52, 13, v52")
    A("v_and_b32 v51, 3, v0")
    A("v_lshl_add_u32 v52, v51, 4, v52")
    A(f"s_mul_i32 s53, s{sP}, {56*8192}")
    A(f"s_lshl_b32 s60, s{sU}, 6")
    A("s_add_u32 s53, s53, s60")
    A(f"s_add_u32 s53, s53, {OUTB_OFF}")
    A(f"buffer_store_dwordx4 v[64:67], v52, {srd(SWS)}, s53 offen sc1")
    A(f"{ldone}:")
    A("s_mov_b64 exec, s[54:55]")
    stamp(9)
    lfin = e.label("L_fin")
    A(f"s_cmp_ge_u32 s{sU}, 56")
    A(f"s_cbranch_scc1 {lfin}")
    A(f"s_cmp_lg_u32 s{sW}, 0")
    A(f"s_cbranch_scc1 {lfin}")
    A(f"s_mov_b32 s61, {timeout}")
    lp = e.label("L_ob"); lpd = e.label("L_obd")
    A(f"{lp}:")
    A("s_add_u32 s53, s56, 4096")
    for i in range(4):
        A(f"buffer_load_dwordx4 {vr(32+4*i,4)}, v{vT}, {srd(SWS)}, s56 offen offset:{i*1024} sc1")
    for i in range(4):
        A(f"buffer_load_dwordx4 {vr(48+4*i,4)}, v{vT}, {srd(SWS)}, s53 offen offset:{i*1024} sc1")
    A("s_waitcnt vmcnt(0)")
    A("v_max3_u32 v64, v32, v33, v34")
    for i in range(3, 31, 2):
        A(f"v_max3_u32 v64, v64, v{32+i}, v{33+i}")
    A("v_max_u32 v64, v64, v63")
    A("v_cmp_eq_u32 vcc, -1, v64")
    A("s_nop 1")
    A("s_cmp_eq_u64 vcc, 0")
    A(f"s_cbranch_scc1 {lpd}")
    A("s_sub_u32 s61, s61, 1")
    A("s_cmp_lg_u32 s61, 0")
    A(f"s_cbranch_scc1 {lp}")
    A(f"{lpd}:")
    tree_sum4(32, 8)
    for r in range(32, 36):
        A("s_nop 1")
        A(f"v_add_f32_dpp v{r}, v{r}, v{r} row_ror:4 row_mask:0xf bank_mask:0xf")
    for r in range(32, 36):
        A("s_nop 1")
        A(f"v_add_f32_dpp v{r}, v{r}, v{r} row_ror:8 row_mask:0xf bank_mask:0xf")
    for r in range(32, 36):
        A(f"v_mov_b32 v40, v{r}"); A("s_nop 1"); A(f"v_permlane16_swap_b32 v{r}, v40"); A(f"v_add_f32 v{r}, v{r}, v40")
        A(f"v_mov_b32 v40, v{r}"); A("s_nop 1"); A(f"v_permlane32_swap_b32 v{r}, v40"); A(f"v_add_f32 v{r}, v{r}, v40")
    A("v_cvt_pk_bf16_f32 v36, v32, v33")
    A("v_cvt_pk_bf16_f32 v37, v34, v35")
    A(f"s_cmp_ge_u32 s{sU}, 28")
    A("s_cselect_b32 s53, 896, 0")
    A(f"s_mul_i32 s60, s{sP}, 896")
    A("s_add_u32 s53, s53, s60")
    A(f"s_lshl_b32 s60, s{sU}, 5")
    A("s_add_u32 s53, s53, s60")
    A(f"v_lshlrev_b32 v40, 3, v{vL}")
    A(f"v_cmp_gt_u32 vcc, 4, v{vL}")
    A("s_and_saveexec_b64 s[54:55], vcc")
    A(f"buffer_store_dwordx2 v[36:37], v40, {srd(SOUT)}, s53 offen")
    A("s_mov_b64 exec, s[54:55]")
    A(f"{lfin}:")
    stamp(10)
    if stamps:
        A("s_lshl_b32 s53, s2, 3")
        A(f"s_add_u32 s53, s53, s{sW}")
        A("s_lshl_b32 s53, s53, 6")
        A(f"s_add_u32 s53, s53, {STAMP_OFF}")
        for i in range(12):
            A(f"v_mov_b32 v{32+i}, s{72+i}")
        A("v_mov_b32 v44, 0")
        A(f"v_cmp_eq_u32 vcc, 0, v{vL}")
        A("s_and_saveexec_b64 s[54:55], vcc")
        for i in range(3):
            A(f"buffer_store_dwordx4 {vr(32+4*i,4)}, v44, {srd(SWS)}, s53 offen offset:{16*i}")
        A("s_mov_b64 exec, s[54:55]")
    A("L_end:")
    return e.text()

if __name__ == "__main__":
    import argparse
    ap = argparse.ArgumentParser()
    ap.add_argument("-o", default="k1.s")
    ap.add_argument("--X", type=int, default=4)
    ap.add_argument("--WO1", type=int, default=16)
    ap.add_argument("--stamps", action="store_true")
    ap.add_argument("--nopoison", action="store_true")
    a = ap.parse_args()
    body = gen(X=a.X, WO1=a.WO1, stamps=a.stamps, nopoison=a.nopoison)
    open(a.o, "w").write(single(body, 256, 512, 163840, 256, 102, 256))
```

```python
import sys
from asmlib import *

class E:
    def __init__(s):
        s.l = []; s.lab = 0
    def __call__(s, t): s.l.append(t)
    def label(s, p="L"):
        s.lab += 1
        return f"{p}_{s.lab}"
    def text(s): return "\n".join(s.l)

QA_OFF = 0
QVB_OFF = 256 << 10
FL2_OFF = 384 << 10
FL3_OFF = 400 << 10
EPOCH_OFF = 512 << 10
ST_OFF = 576 << 10
INBOX_OFF = 1 << 20
IB_STRIDE = 40960
CTX_REL = 32768
F2_REL = 34816
STP_REL = 36864
OUTB_OFF = 20 << 20
STAMP_OFF = 32 << 20

R1 = 131072
SP_L = R1
QV_L = R1 + 16384
G1S = R1 + 17408
AL_L = G1S
OP_L = G1S + 1024
QP_L = G1S + 1024
CP_L = G1S + 5120
CNT_L = R1 + 30720
STL = CNT_L + 256
OPP_L = 0
C_QP, C_QV, C_SP, C_POIS, C_OP, C_CP, C_OPP, C_G0DONE, C_QAACK, C_F3 = range(10)

sW, sP, sH, sJ, sB, sKB, sU, sTAG = 3, 4, 5, 6, 7, 8, 9, 11
SWS = 12
tA, tB, sG, sIB, sOB, sH5, sEX, sTO, sA1, sA2, sI, sM, sST, sST0, sX1, sTP = 16, 17, 18, 19, 20, 21, 22, 24, 25, 26, 27, 28, 30, 32, 33, 34
SX, SCKV, SWQ, SWUK, SWUV, SWO, SOUT = 36, 40, 44, 48, 52, 56, 60
PB = 36
def srd(r): return f"s[{r}:{r+3}]"
vL, vN, vK = 1, 2, 3
vSEL = 4
vL16, vN16, vSTA = 12, 14, 15
def vr(a, n): return f"v[{a}:{a+n-1}]"

def gen(stamps=False, timeout=100000, nt=False, f2_sleep=2, st_sleep=2):
    e = E(); A = e
    NT = " nt" if nt else ""
    def stamp(idx):
        if not stamps: return
        A(f"s_memrealtime s[{sST}:{sST+1}]")
        A("s_waitcnt lgkmcnt(0)")
        if idx == 0:
            A(f"s_mov_b32 s{sST0}, s{sST}")
        else:
            A(f"v_mov_b32 v29, s{sST}")
            A("s_mov_b64 exec, 1")
            A(f"ds_write_b32 v{vSTA}, v29 offset:{4*idx}")
            A("s_mov_b64 exec, -1")
    def build_A(dst, xreg, tp):
        for p in range(4):
            A(f"v_perm_b32 v{dst+p}, v{xreg}, v{xreg}, v{vSEL+4*tp+p}")
    def tree_sum4(base, n):
        step = 1
        while step < n:
            for q in range(0, n, 2*step):
                if q + step >= n: continue
                a, b2 = base + 4*q, base + 4*(q+step)
                A(f"v_pk_add_f32 {vr(a,2)}, {vr(a,2)}, {vr(b2,2)}")
                A(f"v_pk_add_f32 {vr(a+2,2)}, {vr(a+2,2)}, {vr(b2+2,2)}")
            step *= 2
    def poll(name, check, reissue, sleep=0):
        lp = e.label("L_" + name); lpd = e.label("L_" + name + "d")
        A(f"s_mov_b32 s{sTO}, {timeout}")
        A(f"{lp}:")
        check()
        A(f"s_cbranch_scc1 {lpd}")
        A(f"s_sub_u32 s{sTO}, s{sTO}, 1")
        A(f"s_cmp_eq_u32 s{sTO}, 0")
        A(f"s_cbranch_scc1 {lpd}")
        if sleep: A(f"s_sleep {sleep}")
        reissue()
        A("s_waitcnt vmcnt(0)")
        A(f"s_branch {lp}")
        A(f"{lpd}:")
    def spoll(name, soff, nblk, base, tagregs, sleep=0):
        lp = e.label("L_" + name); lpd = e.label("L_" + name + "d")
        A(f"s_mov_b32 s{sTO}, {timeout}")
        A(f"{lp}:")
        for k in range(nblk):
            A(f"s_load_dwordx16 s[{base+16*k}:{base+16*k+15}], s[{SWS}:{SWS+1}], s{soff} offset:{64*k} glc")
        A("s_waitcnt lgkmcnt(0)")
        if tagregs == "all":
            n = 16 * nblk
            A(f"s_xor_b64 s[{sM}:{sM+1}], s[{base}:{base+1}], s[{sTP}:{sTP+1}]")
            for k in range(2, n, 2):
                A(f"s_xor_b64 s[{sEX}:{sEX+1}], s[{base+k}:{base+k+1}], s[{sTP}:{sTP+1}]")
                A(f"s_or_b64 s[{sM}:{sM+1}], s[{sM}:{sM+1}], s[{sEX}:{sEX+1}]")
            A(f"s_cmp_eq_u64 s[{sM}:{sM+1}], 0")
        else:
            A(f"s_xor_b32 s{sM}, s{tagregs[0]}, s{sTAG}")
            for r in tagregs[1:]:
                A(f"s_xor_b32 s{sM+1}, s{r}, s{sTAG}")
                A(f"s_or_b32 s{sM}, s{sM}, s{sM+1}")
            A(f"s_cmp_eq_u32 s{sM}, 0")
        A(f"s_cbranch_scc1 {lpd}")
        A(f"s_sub_u32 s{sTO}, s{sTO}, 1")
        A(f"s_cmp_eq_u32 s{sTO}, 0")
        A(f"s_cbranch_scc1 {lpd}")
        if sleep: A(f"s_sleep {sleep}")
        A(f"s_branch {lp}")
        A(f"{lpd}:")
    def poison_check(regs, tmp):
        def f():
            r = list(regs)
            A(f"v_max3_u32 v{tmp}, v{r[0]}, v{r[1]}, v{r[2]}"); r = r[3:]
            while len(r) >= 2:
                A(f"v_max3_u32 v{tmp}, v{tmp}, v{r[0]}, v{r[1]}"); r = r[2:]
            if r:
                A(f"v_max_u32 v{tmp}, v{tmp}, v{r[0]}")
            A(f"v_cmp_eq_u32 vcc, -1, v{tmp}")
            A("s_nop 1")
            A("s_cmp_eq_u64 vcc, 0")
        return f
    def signal(c, areg=30):
        A("s_mov_b64 exec, 1")
        A(f"ds_add_u32 v{areg}, v31 offset:{4*c}")
        A("s_mov_b64 exec, -1")
    def arrive(c):
        A("s_waitcnt lgkmcnt(0)")
        signal(c)
    def wait_cnt(c, n, areg=30, sleep=0):
        lp = e.label("L_w"); lpd = e.label("L_wd")
        A(f"s_mov_b32 s{sTO}, {timeout*20}")
        A(f"{lp}:")
        A(f"ds_read_b32 v29, v{areg} offset:{4*c}")
        A("s_waitcnt lgkmcnt(0)")
        A(f"v_readfirstlane_b32 s{tB}, v29")
        A(f"s_sub_u32 s{sTO}, s{sTO}, 1")
        A(f"s_cmp_eq_u32 s{sTO}, 0")
        A(f"s_cbranch_scc1 {lpd}")
        A(f"s_cmp_ge_u32 s{tB}, {n}")
        A(f"s_cbranch_scc1 {lpd}")
        if sleep: A(f"s_sleep {sleep}")
        A(f"s_branch {lp}")
        A(f"{lpd}:")
    def gsync(c):
        arrive(c); wait_cnt(c, 4)
    def selectors():
        A(f"v_and_b32 v17, 1, v{vN}")
        A(f"v_bfe_u32 v18, v{vN}, 1, 2")
        A("v_cmp_eq_u32 vcc, 1, v17")
        for tp in range(2):
            lo = 0x0C0C0000 | ((2*tp+1) << 8) | (2*tp)
            hi = ((2*tp+1) << 24) | ((2*tp) << 16) | 0x0C0C
            A(f"v_mov_b32 v24, 0x{lo:08x}")
            A(f"v_mov_b32 v25, 0x{hi:08x}")
            A(f"v_cndmask_b32 v{26+tp}, v24, v25, vcc")
        A(f"v_mov_b32 v24, 0x0c0c0c0c")
        for p in range(4):
            A(f"v_cmp_eq_u32 vcc, {p}, v18")
            A("s_nop 1")
            for tp in range(2):
                A(f"v_cndmask_b32 v{vSEL+4*tp+p}, v24, v{26+tp}, vcc")
    def mk_tag():
        A("s_waitcnt lgkmcnt(0)")
        A(f"s_mul_i32 s{sTAG}, s{sTAG}, 0x9E3779B1")
        A(f"s_add_u32 s{sTAG}, s{sTAG}, 0x7F4A7C15")
        A(f"s_mov_b32 s{sTP}, s{sTAG}")
        A(f"s_mov_b32 s{sTP+1}, s{sTAG}")
    def dtile_addr(dst, tmp, bshift, sbase):
        A(f"v_lshrrev_b32 v{dst}, 1, v{vK}")
        A(f"v_lshlrev_b32 v{dst}, {bshift}, v{dst}")
        A(f"v_lshl_add_u32 v{dst}, v{vN}, 5, v{dst}")
        A(f"v_and_b32 v{tmp}, 1, v{vK}")
        A(f"v_lshl_add_u32 v{dst}, v{tmp}, 4, v{dst}")
        A(f"v_add_u32 v{dst}, s{sbase}, v{dst}")

    A("s_cmp_ge_u32 s2, 256")
    A("s_cbranch_scc1 L_end")
    stamp(0)
    A(f"s_and_b32 s{tA}, s2, 7")
    A(f"s_lshr_b32 s{tB}, s2, 6")
    A(f"s_lshl_b32 s{sG}, s{tA}, 2")
    A(f"s_add_u32 s{sG}, s{sG}, s{tB}")
    A(f"s_lshr_b32 s{sP}, s{sG}, 4")
    A(f"s_mul_i32 s10, s{sP}, 48")
    A(f"s_load_dwordx2 s[{SWS}:{SWS+1}], s[0:1], 112")
    for r, off in ((SX, 0), (SWQ, 16), (SWUK, 24), (SCKV, 8), (SWUV, 32), (SWO, 40)):
        A(f"s_load_dwordx2 s[{r}:{r+1}], s[0:1], s10 offset:{off}")
    A(f"s_and_b32 s{sH}, s{sG}, 15")
    A(f"s_lshr_b32 s{tA}, s2, 3")
    A(f"s_and_b32 s{sJ}, s{tA}, 7")
    A(f"s_lshl_b32 s{sU}, s{sH}, 3")
    A(f"s_add_u32 s{sU}, s{sU}, s{sJ}")
    A(f"s_lshr_b32 s{sB}, s{sU}, 6")
    A(f"s_and_b32 s{sKB}, s{sU}, 63")
    A(f"v_and_b32 v{vL}, 63, v0")
    A(f"v_and_b32 v{vN}, 15, v0")
    A(f"v_bfe_u32 v{vK}, v0, 4, 2")
    A(f"v_lshrrev_b32 v13, 6, v0")
    A("s_nop 0")
    A(f"v_readfirstlane_b32 s{sW}, v13")
    for r, sz in ((SX, 1792), (SCKV, 16777216), (SWQ, 3670016), (SWUK, 8388608), (SWUV, 8388608), (SWO, 3670016), (SWS, 268435456)):
        A(f"s_mov_b32 s{r+2}, {sz}")
        A(f"s_mov_b32 s{r+3}, 0x00020000")
    A(f"s_and_b32 s{sI}, s{sW}, 3")
    A(f"v_lshlrev_b32 v{vL16}, 4, v{vL}")
    A(f"v_lshlrev_b32 v{vN16}, 4, v{vN}")
    A(f"v_mov_b32 v30, {CNT_L}")
    A("v_mov_b32 v31, 1")
    A(f"v_lshlrev_b32 v{vSTA}, 6, v13")
    A(f"v_add_u32 v{vSTA}, {STL}, v{vSTA}")
    A(f"v_lshlrev_b32 v13, 2, v{vL}")
    A(f"v_add_u32 v13, {CNT_L}, v13")
    A("v_mov_b32 v29, 0")
    A("ds_write_b32 v13, v29")
    A(f"s_lshl_b32 s{sH5}, s{sH}, 9")
    A(f"s_lshl_b32 s{sIB}, s{sP}, 7")
    A(f"s_add_u32 s{sIB}, s{sIB}, s{sU}")
    A(f"s_mul_i32 s{sIB}, s{sIB}, {IB_STRIDE}")
    A(f"s_add_u32 s{sIB}, s{sIB}, {INBOX_OFF}")
    A(f"s_mul_i32 s{sOB}, s{sP}, 56")
    A(f"s_add_u32 s{sOB}, s{sOB}, s{sU}")
    A(f"s_lshl_b32 s{sOB}, s{sOB}, 13")
    A(f"s_add_u32 s{sOB}, s{sOB}, {OUTB_OFF}")
    A(f"s_lshl_b32 s{tA}, s{sI}, 2")
    A(f"v_add_u32 v28, s{tA}, v30")
    A("s_waitcnt lgkmcnt(0)")
    A(f"s_lshl_b32 s{tA}, s{sP}, 8")
    A(f"s_add_u32 s{tA}, s{tA}, {EPOCH_OFF}")
    A(f"s_load_dword s{sTAG}, s[{SWS}:{SWS+1}], s{tA}")
    A(f"s_cmp_ge_u32 s{sW}, 4")
    A("s_cbranch_scc1 L_G1")

    A("s_setprio 2")
    WUK = 80; ACC = 176
    A(f"v_lshlrev_b32 v16, 13, v{vN}")
    A(f"v_lshl_add_u32 v16, v{vK}, 4, v16")
    A(f"s_lshl_b32 s{tA}, s{sJ}, 2")
    A(f"s_add_u32 s{tA}, s{tA}, s{sI}")
    A(f"s_lshl_b32 s{tA}, s{tA}, 18")
    A(f"s_add_u32 s{tA}, s{tA}, s{sH5}")
    A("s_barrier")
    for tl in range(2):
        if tl: A(f"s_add_u32 s{tA}, s{tA}, {16*8192}")
        for ks in range(8):
            A(f"buffer_load_dwordx4 {vr(WUK+(tl*8+ks)*4,4)}, v16, {srd(SWUK)}, s{tA} offen offset:{ks*64}{NT}")
    A("s_setprio 3")
    mk_tag()
    A(f"s_lshl_b32 s{sA1}, s{sG}, 11")
    A(f"s_lshl_b32 s{tA}, s{sI}, 9")
    A(f"s_add_u32 s{sA1}, s{sA1}, s{tA}")
    A(f"s_add_u32 s{sA1}, s{sA1}, {QVB_OFF}")
    for p in range(2):
        if p: A(f"s_add_u32 s{sA1}, s{sA1}, 256")
        spoll(f"qv{p}", sA1, 4, PB, [PB + 2*k + 1 for k in range(32)], sleep=1)
        for k in range(32):
            A(f"v_writelane_b32 v32, s{PB+2*k}, {32*p+k}")
    A("v_lshlrev_b32 v17, 1, v0")
    A(f"v_add_u32 v17, {QV_L}, v17")
    A("ds_write_b16 v17, v32")
    A("ds_write_b16_d16_hi v17, v32 offset:512")
    gsync(C_QV)
    A(f"v_and_b32 v17, 1, v{vN}")
    A("v_lshlrev_b32 v17, 9, v17")
    A(f"v_lshl_add_u32 v17, v{vK}, 4, v17")
    A(f"v_add_u32 v17, {QV_L}, v17")
    for ks in range(8):
        A(f"ds_read_b128 {vr(32+4*ks,4)}, v17 offset:{ks*64}")
    A("s_waitcnt lgkmcnt(0)")
    stamp(2)
    A("s_waitcnt vmcnt(0)")
    for ks in range(8):
        for tl in range(2):
            c = "0" if ks == 0 else vr(ACC+4*tl, 4)
            A(f"v_mfma_f32_16x16x32_bf16 {vr(ACC+4*tl,4)}, {vr(WUK+(tl*8+ks)*4,4)}, {vr(32+4*ks,4)}, {c}")
    A(f"v_lshlrev_b32 v17, 15, v{vN}")
    A(f"v_lshl_add_u32 v17, v{vK}, 3, v17")
    A(f"s_lshl_b32 s{tA}, s{sP}, 16")
    A(f"s_lshl_b32 s{tB}, s{sH}, 11")
    A(f"s_add_u32 s{tA}, s{tA}, s{tB}")
    A(f"s_lshl_b32 s{tB}, s{sJ}, 8")
    A(f"s_add_u32 s{tA}, s{tA}, s{tB}")
    A(f"s_lshl_b32 s{tB}, s{sI}, 6")
    A(f"s_add_u32 s{tA}, s{tA}, s{tB}")
    A("v_mov_b32 v32, 0x3db8aa3b")
    A("s_nop 1")
    for r in range(8):
        A(f"v_mul_f32 v{ACC+r}, v32, v{ACC+r}")
    for tl in range(2):
        A(f"v_cvt_pk_bf16_f32 v{ACC+8+2*tl}, v{ACC+4*tl}, v{ACC+4*tl+1}")
        A(f"v_cvt_pk_bf16_f32 v{ACC+9+2*tl}, v{ACC+4*tl+2}, v{ACC+4*tl+3}")
    A(f"v_cmp_gt_u32 vcc, 2, v{vN}")
    A(f"s_and_saveexec_b64 s[{sEX}:{sEX+1}], vcc")
    for tl in range(2):
        A(f"buffer_store_dwordx2 {vr(ACC+8+2*tl,2)}, v17, {srd(SWS)}, s{tA} offen offset:{32*tl} sc1")
    A(f"s_mov_b64 exec, s[{sEX}:{sEX+1}]")
    QAr = 32; CA = 64; SA = 192; AD = 208; TD = 20
    A(f"s_lshl_b32 s{sX1}, s{sI}, 15")
    for ks in range(4):
        A(f"v_add_u32 v{AD+ks}, {4*ks}, v{vK}")
        A(f"v_xor_b32 v{AD+ks}, v{AD+ks}, v{vN}")
        A(f"v_lshlrev_b32 v{AD+ks}, 4, v{AD+ks}")
        A(f"v_lshl_add_u32 v{AD+ks}, v{vN}, 8, v{AD+ks}")
        A(f"v_add_u32 v{AD+ks}, s{sX1}, v{AD+ks}")
    A(f"v_lshrrev_b32 v{AD+4}, 2, v{vN}")
    A(f"v_and_b32 v{AD+5}, 3, v{vN}")
    A(f"v_lshl_add_u32 v{AD+6}, v{vK}, 2, v{AD+4}")
    A(f"v_lshlrev_b32 v{AD+6}, 8, v{AD+6}")
    A(f"v_add_u32 v{AD+6}, s{sX1}, v{AD+6}")
    A(f"v_xor_b32 v{AD+7}, v{AD+5}, v{vK}")
    A(f"v_lshl_add_u32 v{AD+6}, v{AD+7}, 6, v{AD+6}")
    A(f"v_and_b32 v{AD+5}, 1, v{AD+5}")
    for t in range(8):
        tau, hb = t >> 1, t & 1
        A(f"v_xor_b32 v{AD+7}, {tau}, v{AD+4}")
        A(f"v_lshl_add_u32 v{TD+t}, v{AD+7}, 4, v{AD+6}")
        A(f"v_xor_b32 v{AD+7}, {hb}, v{AD+5}")
        A(f"v_lshl_add_u32 v{TD+t}, v{AD+7}, 3, v{TD+t}")
    wait_cnt(C_POIS, 4)
    A("s_waitcnt vmcnt(0)")
    A("s_mov_b64 exec, 1")
    A(f"ds_add_rtn_u32 v29, v30, v31 offset:{4*C_QAACK}")
    A("s_waitcnt lgkmcnt(0)")
    A(f"v_readfirstlane_b32 s{tB}, v29")
    lnf = e.label("L_nof2")
    A(f"s_cmp_lg_u32 s{tB}, 3")
    A(f"s_cbranch_scc1 {lnf}")
    A("s_mov_b64 exec, -1")
    A(f"s_mul_i32 s{tA}, s{sP}, {128*IB_STRIDE}")
    A(f"s_lshl_b32 s{tB}, s{sJ}, 6")
    A(f"s_add_u32 s{tA}, s{tA}, s{tB}")
    A(f"s_lshl_b32 s{tB}, s{sH}, 2")
    A(f"s_add_u32 s{tA}, s{tA}, s{tB}")
    A(f"s_add_u32 s{tA}, s{tA}, {INBOX_OFF + F2_REL}")
    A(f"s_mov_b32 s{tB}, {IB_STRIDE}")
    A(f"v_mul_lo_u32 v17, v{vL}, s{tB}")
    A(f"v_mov_b32 v29, s{sTAG}")
    A(f"buffer_store_dword v29, v17, {srd(SWS)}, s{tA} offen sc1")
    A(f"s_add_u32 s{tA}, s{tA}, {64*IB_STRIDE}")
    A(f"buffer_store_dword v29, v17, {srd(SWS)}, s{tA} offen sc1")
    A(f"{lnf}:")
    A("s_mov_b64 exec, -1")
    stamp(3)
    A(f"s_lshl_b32 s{tA}, s{sI}, 7")
    A(f"s_add_u32 s{sA1}, s{sIB}, s{tA}")
    A(f"s_add_u32 s{sA1}, s{sA1}, {F2_REL}")
    A(f"v_lshlrev_b32 v18, 11, v{vN}")
    A(f"v_lshl_add_u32 v18, v{vK}, 4, v18")
    A(f"s_lshl_b32 s{sA2}, s{sP}, 1")
    A(f"s_add_u32 s{sA2}, s{sA2}, s{sB}")
    A(f"s_lshl_b32 s{sA2}, s{sA2}, 15")
    A(f"s_lshl_b32 s{tA}, s{sI}, 9")
    A(f"s_add_u32 s{sA2}, s{sA2}, s{tA}")
    spoll("f2", sA1, 2, PB, "all", sleep=f2_sleep)
    for k8 in range(8):
        A(f"buffer_load_dwordx4 {vr(QAr+4*k8,4)}, v18, {srd(SWS)}, s{sA2} offen offset:{k8*64} sc1")
    stamp(5)
    wait_cnt(16, 1, areg=28, sleep=1)
    stamp(4)
    for cr in range(2):
        for kt in range(4):
            for ks in range(4):
                A(f"ds_read_b128 {vr(CA+cr*64+(kt*4+ks)*4,4)}, v{AD+ks} offset:{cr*16384+kt*4096}")
    A("s_waitcnt vmcnt(0) lgkmcnt(0)")
    for cr in range(2):
        for ks in range(4):
            for kt in range(4):
                c = "0" if (cr == 0 and ks == 0) else vr(SA+4*kt, 4)
                A(f"v_mfma_f32_16x16x32_bf16 {vr(SA+4*kt,4)}, {vr(CA+cr*64+(kt*4+ks)*4,4)}, {vr(QAr+(cr*4+ks)*4,4)}, {c}")
    A(f"s_lshl_b32 s{tA}, s{sI}, 12")
    A(f"s_add_u32 s{tA}, s{tA}, {SP_L}")
    A(f"v_add_u32 v17, s{tA}, v{vL16}")
    A("s_nop 7")
    for kt in range(4):
        A(f"ds_write_b128 v17, {vr(SA+4*kt,4)} offset:{kt*1024}")
    arrive(C_SP)
    stamp(7)
    CT = 64
    for cr in range(2):
        for t in range(8):
            for ks2 in range(2):
                for u in range(2):
                    A(f"ds_read_b64_tr_b16 {vr(CT+cr*64+(t*2+ks2)*4+2*u,2)}, v{TD+t} offset:{cr*16384+(32*ks2+16*u)*256}")
    wait_cnt(C_SP, 4)
    stamp(8)
    A(f"v_add_u32 v17, {SP_L}, v{vL16}")
    for w2 in range(4):
        for kt in range(4):
            A(f"ds_read_b128 {vr(192+w2*16+kt*4,4)}, v17 offset:{w2*4096+kt*1024}")
    A("s_waitcnt lgkmcnt(0)")
    for r in range(0, 16, 2):
        A(f"v_pk_add_f32 {vr(192+r,2)}, {vr(192+r,2)}, {vr(208+r,2)}")
        A(f"v_pk_add_f32 {vr(224+r,2)}, {vr(224+r,2)}, {vr(240+r,2)}")
    for r in range(0, 16, 2):
        A(f"v_pk_add_f32 {vr(192+r,2)}, {vr(192+r,2)}, {vr(224+r,2)}")
    A(f"v_max3_f32 v48, v{SA}, v{SA+1}, v{SA+2}")
    for i in range(3, 15, 2):
        A(f"v_max3_f32 v48, v48, v{SA+i}, v{SA+i+1}")
    A(f"v_max_f32 v48, v48, v{SA+15}")
    A("v_mov_b32 v49, v48"); A("s_nop 1"); A("v_permlane32_swap_b32 v48, v49"); A("v_max_f32 v48, v48, v49")
    A("v_mov_b32 v49, v48"); A("s_nop 1"); A("v_permlane16_swap_b32 v48, v49"); A("v_max_f32 v48, v48, v49")
    for i in range(16): A(f"v_sub_f32 v{SA+i}, v{SA+i}, v48")
    for i in range(16): A(f"v_exp_f32 v{SA+i}, v{SA+i}")
    A("s_nop 0")
    for ks2 in range(2):
        for q in range(4):
            s = SA + 8*ks2 + 2*q
            A(f"v_cvt_pk_bf16_f32 v{32+4*ks2+q}, v{s}, v{s+1}")
    A(f"v_add_f32 v49, v{SA}, v{SA+1}")
    for i in range(2, 16): A(f"v_add_f32 v49, v49, v{SA+i}")
    OA = 192
    A("s_nop 1")
    for cr in range(2):
        for t in range(8):
            A(f"v_mfma_f32_16x16x32_bf16 {vr(OA+cr*32+4*t,4)}, {vr(CT+cr*64+(t*2)*4,4)}, v[32:35], 0")
        for t in range(8):
            A(f"v_mfma_f32_16x16x32_bf16 {vr(OA+cr*32+4*t,4)}, {vr(CT+cr*64+(t*2+1)*4,4)}, v[36:39], {vr(OA+cr*32+4*t,4)}")
    signal(C_G0DONE)
    stamp(9)
    A("v_mov_b32 v50, v49"); A("s_nop 1"); A("v_permlane32_swap_b32 v49, v50"); A("v_add_f32 v49, v49, v50")
    A("v_mov_b32 v50, v49"); A("s_nop 1"); A("v_permlane16_swap_b32 v49, v50"); A("v_add_f32 v49, v49, v50")
    A(f"s_mov_b32 s{tA}, {IB_STRIDE*8}")
    A(f"v_mul_lo_u32 v17, v{vN}, s{tA}")
    A(f"v_lshl_add_u32 v18, v{vK}, 4, v17")
    A(f"s_lshl_b32 s{tA}, s{sP}, 7")
    A(f"s_lshl_b32 s{tB}, s{sI}, 1")
    A(f"s_add_u32 s{tA}, s{tA}, s{tB}")
    A(f"s_mul_i32 s{tA}, s{tA}, {IB_STRIDE}")
    A(f"s_add_u32 s{tA}, s{tA}, {INBOX_OFF}")
    A(f"s_lshl_b32 s{tB}, s{sU}, 8")
    A(f"s_add_u32 s{sA1}, s{tA}, s{tB}")
    for cr in range(2):
        if cr:
            A(f"s_add_u32 s{sA1}, s{sA1}, {IB_STRIDE}")
        for tau in range(4):
            d = 64 + cr*16 + 4*tau
            a, b2 = OA + cr*32 + 8*tau, OA + cr*32 + 8*tau + 4
            A(f"v_cvt_pk_bf16_f32 v{d}, v{a}, v{a+1}")
            A(f"v_cvt_pk_bf16_f32 v{d+1}, v{a+2}, v{a+3}")
            A(f"v_cvt_pk_bf16_f32 v{d+2}, v{b2}, v{b2+1}")
            A(f"v_cvt_pk_bf16_f32 v{d+3}, v{b2+2}, v{b2+3}")
            A(f"buffer_store_dwordx4 {vr(d,4)}, v18, {srd(SWS)}, s{sA1} offen offset:{tau*64} sc1")
    stamp(6)
    A(f"s_mov_b32 s{tB}, {IB_STRIDE}")
    A(f"v_mul_lo_u32 v16, v{vK}, s{tB}")
    A("v_add_u32 v17, v17, v16")
    A(f"s_lshl_b32 s{tB}, s{sU}, 4")
    A(f"s_add_u32 s{tA}, s{tA}, s{tB}")
    A(f"s_add_u32 s{tA}, s{tA}, {STP_REL}")
    A(f"v_mov_b32 v50, s{sTAG}")
    A("v_mov_b32 v51, 0")
    A("s_waitcnt vmcnt(0)")
    A("s_mov_b32 exec_hi, 0")
    A(f"buffer_store_dwordx4 v[48:51], v17, {srd(SWS)}, s{tA} offen sc1")
    A("s_mov_b64 exec, -1")
    signal(C_F3)
    stamp(10)
    A(f"s_cmp_ge_u32 s{sU}, 56")
    A("s_cbranch_scc1 L_fin")
    A(f"s_cmp_lg_u32 s{sI}, 0")
    A("s_cbranch_scc1 L_fin")
    A(f"s_load_dwordx2 s[{SOUT}:{SOUT+1}], s[0:1], 96")
    A(f"s_mov_b32 s{SOUT+2}, 3584")
    A(f"s_mov_b32 s{SOUT+3}, 0x00020000")
    wait_cnt(C_OPP, 5, sleep=1)
    A(f"s_add_u32 s{tA}, s{sOB}, 4096")
    def ob_loads():
        for i in range(4):
            A(f"buffer_load_dwordx4 {vr(32+4*i,4)}, v{vL16}, {srd(SWS)}, s{sOB} offen offset:{i*1024} sc1")
        for i in range(4):
            A(f"buffer_load_dwordx4 {vr(48+4*i,4)}, v{vL16}, {srd(SWS)}, s{tA} offen offset:{i*1024} sc1")
    ob_loads()
    A("s_waitcnt vmcnt(0)")
    poll("ob", poison_check(range(32, 64), 64), ob_loads)
    tree_sum4(32, 8)
    for rot in (4, 8):
        A("s_nop 1")
        for r in range(32, 36):
            A(f"v_add_f32_dpp v{r}, v{r}, v{r} row_ror:{rot} row_mask:0xf bank_mask:0xf")
    for r in range(32, 36):
        A(f"v_mov_b32 v40, v{r}"); A("s_nop 1"); A(f"v_permlane16_swap_b32 v{r}, v40"); A(f"v_add_f32 v{r}, v{r}, v40")
        A(f"v_mov_b32 v40, v{r}"); A("s_nop 1"); A(f"v_permlane32_swap_b32 v{r}, v40"); A(f"v_add_f32 v{r}, v{r}, v40")
    A("v_cvt_pk_bf16_f32 v36, v32, v33")
    A("v_cvt_pk_bf16_f32 v37, v34, v35")
    A(f"s_cmp_ge_u32 s{sU}, 28")
    A(f"s_cselect_b32 s{tA}, 896, 0")
    A(f"s_mul_i32 s{tB}, s{sP}, 896")
    A(f"s_add_u32 s{tA}, s{tA}, s{tB}")
    A(f"s_lshl_b32 s{tB}, s{sU}, 5")
    A(f"s_add_u32 s{tA}, s{tA}, s{tB}")
    A(f"v_lshlrev_b32 v40, 3, v{vL}")
    A("s_mov_b64 exec, 15")
    A(f"buffer_store_dwordx2 v[36:37], v40, {srd(SOUT)}, s{tA} offen")
    A("s_mov_b64 exec, -1")
    A(f"s_cmp_lg_u32 s{sU}, 0")
    A("s_cbranch_scc1 L_fin")
    A(f"s_lshl_b32 s{tA}, s{sP}, 8")
    A(f"s_add_u32 s{tA}, s{tA}, {EPOCH_OFF}")
    A(f"v_mov_b32 v40, s{sTAG}")
    A("v_mov_b32 v41, 0")
    A("s_mov_b64 exec, 1")
    A(f"buffer_store_dword v40, v41, {srd(SWS)}, s{tA} offen sc1")
    A("s_mov_b64 exec, -1")
    A("s_branch L_fin")

    A("L_G1:")
    A("s_setprio 3")
    vX = 32; WQ = 48; AOP = 192
    A(f"v_lshrrev_b32 v13, 3, v{vN}")
    A("v_mul_u32_u24 v13, 896, v13")
    A(f"v_mad_u32_u24 v13, v{vK}, 56, v13")
    A(f"s_mul_i32 s{tA}, s{sI}, 224")
    for q in range(3):
        A(f"buffer_load_dwordx4 {vr(vX+4*q,4)}, v13, {srd(SX)}, s{tA} offen offset:{16*q}")
    A(f"buffer_load_dwordx2 {vr(vX+12,2)}, v13, {srd(SX)}, s{tA} offen offset:48")
    A(f"v_lshrrev_b32 v19, 2, v{vN}")
    A(f"v_mad_u32_u24 v19, v{vK}, 28, v19")
    A("v_lshlrev_b32 v19, 13, v19")
    A(f"v_and_b32 v16, 3, v{vN}")
    A("v_lshl_add_u32 v19, v16, 4, v19")
    A(f"s_mul_i32 s{tA}, s{sI}, {112*8192}")
    A(f"s_add_u32 s{tA}, s{tA}, s{sH5}")
    A(f"s_lshl_b32 s{tB}, s{sJ}, 6")
    A(f"s_add_u32 s{tA}, s{tA}, s{tB}")
    for t in range(7):
        if t > 0: A(f"s_add_u32 s{tA}, s{tA}, {4*8192}")
        A(f"buffer_load_dwordx4 {vr(WQ+4*t,4)}, v19, {srd(SWQ)}, s{tA} offen{NT}")
    A("s_barrier")
    selectors()
    mk_tag()
    A("s_waitcnt vmcnt(6)")
    seq = [(t, a) for t in range(7) for a in range(4)]
    build_A(AOP, vX, 0)
    for n, (t, a) in enumerate(seq):
        cur = AOP + 4*(n & 1)
        if n + 1 < len(seq):
            t2, a2 = seq[n+1]
            build_A(AOP + 4*((n+1) & 1), vX + ((4*t2+a2) >> 1), a2 & 1)
        else:
            A("s_nop 1")
        if a == 0 and t > 0:
            A(f"s_waitcnt vmcnt({6 - t})")
        c = "0" if t == 0 else vr(ACC+4*a, 4)
        A(f"v_mfma_f32_16x16x32_bf16 {vr(ACC+4*a,4)}, {vr(cur,4)}, {vr(WQ+4*t,4)}, {c}")
    A(f"v_lshrrev_b32 v17, 2, v{vN}")
    A("s_nop 7")
    for a in range(1, 4):
        A(f"v_cmp_eq_u32 vcc, {a}, v17")
        A("s_nop 1")
        for r in range(4):
            A(f"v_cndmask_b32 v{ACC+r}, v{ACC+r}, v{ACC+4*a+r}, vcc")
    for rot in (4, 8):
        A("s_nop 1")
        for r in range(4):
            A(f"v_add_f32_dpp v{ACC+r}, v{ACC+r}, v{ACC+r} row_ror:{rot} row_mask:0xf bank_mask:0xf")
    A(f"s_lshl_b32 s{tA}, s{sI}, 8")
    A(f"s_add_u32 s{tA}, s{tA}, {QP_L}")
    dtile_addr(17, 18, 7, tA)
    A(f"v_cmp_gt_u32 vcc, 4, v{vN}")
    A(f"s_and_saveexec_b64 s[{sEX}:{sEX+1}], vcc")
    A(f"ds_write_b128 v17, {vr(ACC,4)}")
    A(f"s_mov_b64 exec, s[{sEX}:{sEX+1}]")
    arrive(C_QP)
    lq0 = e.label("L_q0")
    A(f"s_cmp_lg_u32 s{sI}, 0")
    A(f"s_cbranch_scc1 {lq0}")
    wait_cnt(C_QP, 4)
    A(f"v_lshlrev_b32 v17, 2, v{vL}")
    A(f"v_add_u32 v17, {QP_L}, v17")
    for w2 in range(4):
        A(f"ds_read_b32 v{32+w2}, v17 offset:{w2*256}")
    A("s_waitcnt lgkmcnt(0)")
    A("v_add_f32 v32, v32, v33"); A("v_add_f32 v34, v34, v35"); A("v_add_f32 v32, v32, v34")
    A("v_mov_b32 v33, v32"); A("s_nop 1")
    A("v_permlane32_swap_b32 v32, v33")
    A("s_nop 0")
    A("v_cvt_pk_bf16_f32 v34, v32, v33")
    A(f"v_mov_b32 v35, s{sTAG}")
    A(f"v_lshlrev_b32 v17, 3, v{vL}")
    A(f"s_lshl_b32 s{tA}, s{sG}, 11")
    A(f"s_lshl_b32 s{tB}, s{sJ}, 8")
    A(f"s_add_u32 s{tA}, s{tA}, s{tB}")
    A(f"s_add_u32 s{tA}, s{tA}, {QVB_OFF}")
    A("s_mov_b32 exec_hi, 0")
    A(f"buffer_store_dwordx2 v[34:35], v17, {srd(SWS)}, s{tA} offen sc1")
    A("s_mov_b64 exec, -1")
    A(f"{lq0}:")
    stamp(2)
    A("s_setprio 0")
    for i in range(4): A(f"v_mov_b32 v{40+i}, -1")
    lp1 = e.label("L_p1")
    A(f"s_cmp_ge_u32 s{sI}, 2")
    A(f"s_cbranch_scc1 {lp1}")
    A(f"s_lshl_b32 s{tA}, s{sI}, 10")
    A(f"s_add_u32 s{tA}, s{tA}, s{sIB}")
    A(f"s_add_u32 s{tA}, s{tA}, {CTX_REL}")
    A(f"buffer_store_dwordx4 v[40:43], v{vL16}, {srd(SWS)}, s{tA} offen sc1")
    A(f"{lp1}:")
    lp2 = e.label("L_p2")
    A(f"s_cmp_ge_u32 s{sU}, 56")
    A(f"s_cbranch_scc1 {lp2}")
    A(f"s_lshl_b32 s{tA}, s{sI}, 11")
    A(f"s_add_u32 s{tA}, s{tA}, s{sOB}")
    A(f"buffer_store_dwordx4 v[40:43], v{vL16}, {srd(SWS)}, s{tA} offen sc1")
    A(f"buffer_store_dwordx4 v[40:43], v{vL16}, {srd(SWS)}, s{tA} offen offset:1024 sc1")
    A(f"{lp2}:")
    VC = 36
    for tt in range(4):
        A(f"v_add_u32 v{VC+tt}, {4*tt}, v{vK}")
        A(f"v_xor_b32 v{VC+tt}, v{VC+tt}, v{vN}")
        A(f"v_lshlrev_b32 v{VC+tt}, 4, v{VC+tt}")
        A(f"v_lshl_add_u32 v{VC+tt}, v{vK}, 11, v{VC+tt}")
    A(f"s_lshl_b32 s{sA1}, s{sB}, 23")
    A(f"s_lshl_b32 s{tA}, s{sKB}, 17")
    A(f"s_add_u32 s{sA1}, s{sA1}, s{tA}")
    A(f"s_lshl_b32 s{tA}, s{sI}, 9")
    A(f"s_add_u32 s{sA1}, s{sA1}, s{tA}")
    A(f"s_lshl_b32 s{sX1}, s{sI}, 15")
    nd = 0
    for t in range(16):
        for cr in range(2):
            A(f"s_add_u32 s{tA}, s{sX1}, {cr*16384 + t*1024}")
            A(f"s_mov_b32 m0, s{tA}")
            A(f"s_add_u32 s{tB}, s{sA1}, {t*4*2048 + cr*256}")
            A(f"buffer_load_dwordx4 v{VC+(t&3)}, {srd(SCKV)}, s{tB} offen{NT} lds")
            nd += 1
            if nd == 4:
                A("s_waitcnt vmcnt(4)")
                signal(C_POIS)
    stamp(1)
    WUV = 64; WO = 128
    A(f"v_lshrrev_b32 v17, 1, v{vK}")
    A(f"v_and_b32 v19, 1, v{vK}")
    A("v_xor_b32 v19, v19, v17")
    A(f"v_lshl_add_u32 v19, v19, 15, v{vN16}")
    A("v_lshl_add_u32 v19, v17, 18, v19")
    A(f"s_lshl_b32 s{sA1}, s{sJ}, 7")
    A(f"s_lshl_b32 s{tA}, s{sI}, 3")
    A(f"s_add_u32 s{sA1}, s{sA1}, s{tA}")
    A(f"s_lshl_b32 s{sA1}, s{sA1}, 13")
    A(f"s_add_u32 s{sA1}, s{sA1}, s{sH5}")
    for q in range(8):
        A(f"s_add_u32 s{tA}, s{sA1}, {(64*(q>>2) + (q&3))*8192}")
        for dh in range(2):
            A(f"buffer_load_dwordx4 {vr(WUV+(2*q+dh)*4,4)}, v19, {srd(SWUV)}, s{tA} offen offset:{dh*256}{NT}")
        if q == 3:
            A("s_waitcnt vmcnt(8)")
            signal(16, areg=28)
            stamp(4)
    A("v_mov_b32 v17, 1792")
    A(f"v_mad_u32_u24 v17, v{vK}, v17, v{vN16}")
    A(f"s_lshl_b32 s{tA}, s{sU}, 2")
    A(f"s_add_u32 s{tA}, s{tA}, s{sI}")
    A(f"s_mul_i32 s{tA}, s{tA}, {8*896}")
    A(f"v_cmp_gt_u32 s[{sM}:{sM+1}], 8, v{vN}")
    for q in range(2):
        if q: A(f"s_add_u32 s{tA}, s{tA}, 896")
        for cb in range(4):
            if cb == 3: A(f"s_mov_b64 exec, s[{sM}:{sM+1}]")
            A(f"buffer_load_dwordx4 {vr(WO+(4*q+cb)*4,4)}, v17, {srd(SWO)}, s{tA} offen offset:{cb*256}{NT}")
            if cb == 3: A("s_mov_b64 exec, -1")
    A("s_setprio 2")
    IB = 160
    A(f"v_lshl_add_u32 v18, v{vK}, 11, v{vN16}")
    A(f"s_lshl_b32 s{sA2}, s{sI}, 13")
    A(f"s_add_u32 s{sA2}, s{sA2}, s{sIB}")
    A(f"s_lshr_b32 s{sX1}, s{sI}, 1")
    A(f"s_lshl_b32 s{sX1}, s{sX1}, 10")
    A(f"s_add_u32 s{sX1}, s{sX1}, s{sIB}")
    A(f"s_add_u32 s{sX1}, s{sX1}, {STP_REL}")
    def st_loads():
        A(f"buffer_load_dwordx3 v[48:50], v{vL16}, {srd(SWS)}, s{sX1} offen sc1")
    def st_check():
        A(f"v_cmp_ne_u32 vcc, s{sTAG}, v50")
        A("s_nop 1")
        A("s_cmp_eq_u64 vcc, 0")
    wait_cnt(C_F3, 4, sleep=2)
    stamp(5)
    st_loads()
    A("s_waitcnt vmcnt(0)")
    poll("st", st_check, st_loads, sleep=st_sleep)
    stamp(6)
    for q in range(8):
        A(f"buffer_load_dwordx4 {vr(IB+4*q,4)}, v18, {srd(SWS)}, s{sA2} offen offset:{q*256} sc1")
    def wave_reduce(op, r, t):
        for dpp in ("quad_perm:[1,0,3,2]", "quad_perm:[2,3,0,1]", "row_half_mirror", "row_mirror"):
            A("s_nop 1")
            A(f"{op}_dpp v{r}, v{r}, v{r} {dpp} row_mask:0xf bank_mask:0xf")
        A(f"v_mov_b32 v{t}, v{r}"); A("s_nop 1"); A(f"v_permlane16_swap_b32 v{r}, v{t}"); A(f"{op} v{r}, v{r}, v{t}")
        A(f"v_mov_b32 v{t}, v{r}"); A("s_nop 1"); A(f"v_permlane32_swap_b32 v{r}, v{t}"); A(f"{op} v{r}, v{r}, v{t}")
    A("v_mov_b32 v50, v48")
    wave_reduce("v_max_f32", 50, 51)
    A("v_sub_f32 v48, v48, v50")
    A("v_exp_f32 v48, v48")
    A("s_nop 0")
    A("v_mul_f32 v49, v49, v48")
    wave_reduce("v_add_f32", 49, 51)
    A("v_rcp_f32 v49, v49")
    A("s_nop 0")
    A("v_mul_f32 v48, v48, v49")
    A(f"s_lshl_b32 s{tB}, s{sI}, 8")
    A(f"s_add_u32 s{tB}, s{tB}, {AL_L}")
    A(f"v_lshlrev_b32 v50, 2, v{vL}")
    A(f"v_add_u32 v50, s{tB}, v50")
    A("ds_write_b32 v50, v48")
    A(f"s_and_b32 s{tA}, s{sI}, 1")
    A(f"s_lshl_b32 s{tA}, s{tA}, 7")
    A(f"s_add_u32 s{tB}, s{tB}, s{tA}")
    A(f"v_lshlrev_b32 v50, 5, v{vK}")
    A(f"v_add_u32 v50, s{tB}, v50")
    A("s_waitcnt lgkmcnt(0)")
    A("ds_read_b128 v[40:43], v50")
    A("ds_read_b128 v[44:47], v50 offset:16")
    A("s_waitcnt lgkmcnt(0)")
    for q in range(4):
        A(f"v_cvt_pk_bf16_f32 v{52+q}, v{40+2*q}, v{41+2*q}")
    for q in range(4):
        A(f"v_lshlrev_b32 v60, 16, v{52+q}"); A(f"v_and_b32 v61, 0xffff0000, v{52+q}")
        A(f"v_sub_f32 v{40+2*q}, v{40+2*q}, v60"); A(f"v_sub_f32 v{41+2*q}, v{41+2*q}, v61")
        A(f"v_cvt_pk_bf16_f32 v{56+q}, v{40+2*q}, v{41+2*q}")
    A(f"v_cmp_lt_u32 vcc, 7, v{vN}")
    A("s_nop 1")
    for q in range(4):
        A(f"v_cndmask_b32 v{52+q}, v{52+q}, v{56+q}, vcc")
    AOPS = 192
    for q in range(8): build_A(AOPS + 4*q, 52 + (q >> 1), q & 1)
    A("s_waitcnt vmcnt(0)")
    stamp(7)
    for q in range(8):
        c = "0" if q == 0 else "v[40:43]"
        A(f"v_mfma_f32_16x16x32_bf16 v[40:43], {vr(AOPS+4*q,4)}, {vr(IB+4*q,4)}, {c}")
    A(f"s_lshl_b32 s{tA}, s{sI}, 10")
    A(f"s_add_u32 s{tA}, s{tA}, {OP_L}")
    dtile_addr(50, 51, 9, tA)
    A("s_nop 4")
    A("ds_write_b128 v50, v[40:43]")
    gsync(C_OP)
    A(f"v_lshrrev_b32 v19, 3, v{vN}")
    A("v_lshlrev_b32 v19, 11, v19")
    A(f"v_lshl_add_u32 v19, v{vK}, 4, v19")
    A(f"s_lshl_b32 s{tB}, s{sI}, 7")
    A(f"s_add_u32 s{tB}, s{tB}, {OP_L}")
    A(f"v_add_u32 v19, s{tB}, v19")
    for hh in range(2):
        for q in range(4):
            A(f"ds_read_b128 {vr(160+hh*16+4*q,4)}, v19 offset:{q*512+hh*64}")
    A("s_waitcnt lgkmcnt(0)")
    tree_sum4(160, 4); tree_sum4(176, 4)
    A("v_cvt_pk_bf16_f32 v52, v160, v161"); A("v_cvt_pk_bf16_f32 v53, v162, v163")
    A("v_cvt_pk_bf16_f32 v54, v176, v177"); A("v_cvt_pk_bf16_f32 v55, v178, v179")
    for q in range(8): build_A(AOPS + 4*q, 52 + (q >> 1), q & 1)
    A("s_nop 1")
    for q in range(8):
        for dh in range(2):
            c = "0" if q == 0 else vr(40+4*dh, 4)
            A(f"v_mfma_f32_16x16x32_bf16 {vr(40+4*dh,4)}, {vr(AOPS+4*q,4)}, {vr(WUV+(2*q+dh)*4,4)}, {c}")
    A(f"s_lshl_b32 s{tA}, s{sI}, 11")
    A(f"s_add_u32 s{tA}, s{tA}, {CP_L}")
    dtile_addr(50, 51, 10, tA)
    A("s_nop 6")
    A("ds_write_b128 v50, v[40:43]")
    A("ds_write_b128 v50, v[44:47] offset:512")
    arrive(C_CP)
    lc = e.label("L_noctx")
    A(f"s_cmp_ge_u32 s{sI}, 2")
    A(f"s_cbranch_scc1 {lc}")
    wait_cnt(C_CP, 4)
    A(f"s_lshl_b32 s{tB}, s{sI}, 10")
    A(f"s_add_u32 s{tB}, s{tB}, {CP_L}")
    A(f"v_add_u32 v19, s{tB}, v{vL16}")
    for w2 in range(4):
        A(f"ds_read_b128 {vr(160+4*w2,4)}, v19 offset:{w2*2048}")
    A("s_waitcnt lgkmcnt(0)")
    tree_sum4(160, 4)
    A(f"v_lshrrev_b32 v50, 3, v{vL}")
    A(f"s_mov_b32 s{tA}, {IB_STRIDE}")
    A(f"v_mul_lo_u32 v50, v50, s{tA}")
    A(f"v_and_b32 v51, 7, v{vL}")
    A("v_lshl_add_u32 v50, v51, 4, v50")
    A(f"s_mul_i32 s{tA}, s{sG}, {8*IB_STRIDE}")
    A(f"s_add_u32 s{tA}, s{tA}, {INBOX_OFF + CTX_REL}")
    A(f"s_lshl_b32 s{tB}, s{sJ}, 8")
    A(f"s_add_u32 s{tA}, s{tA}, s{tB}")
    A(f"s_lshl_b32 s{tB}, s{sI}, 7")
    A(f"s_add_u32 s{tA}, s{tA}, s{tB}")
    A(f"buffer_store_dwordx4 v[160:163], v50, {srd(SWS)}, s{tA} offen sc1")
    A(f"{lc}:")
    stamp(8)
    A(f"v_lshrrev_b32 v19, 3, v{vN}")
    A("v_lshlrev_b32 v19, 7, v19")
    A(f"v_lshl_add_u32 v19, v{vK}, 3, v19")
    A(f"s_lshl_b32 s{sA2}, s{sI}, 5")
    A(f"s_add_u32 s{sA2}, s{sA2}, s{sIB}")
    A(f"s_add_u32 s{sA2}, s{sA2}, {CTX_REL}")
    def cx_loads():
        for s in range(8):
            A(f"buffer_load_dwordx2 {vr(176+2*s,2)}, v19, {srd(SWS)}, s{sA2} offen offset:{s*256} sc1")
    cx_loads()
    A("s_waitcnt vmcnt(0)")
    poll("cx", poison_check(range(176, 192), 50), cx_loads)
    stamp(9)
    for st in (1, 2, 4):
        for s in range(0, 8, 2*st):
            A(f"v_pk_add_f32 {vr(176+2*s,2)}, {vr(176+2*s,2)}, {vr(176+2*(s+st),2)}")
    A("v_cvt_pk_bf16_f32 v52, v176, v177")
    build_A(AOPS, 52, 0); build_A(AOPS+4, 52, 1)
    A("s_nop 1")
    OC = 224
    for q in range(2):
        for cb in range(4):
            c = "0" if q == 0 else vr(OC+4*cb, 4)
            A(f"v_mfma_f32_16x16x32_bf16 {vr(OC+4*cb,4)}, {vr(AOPS+4*q,4)}, {vr(WO+(4*q+cb)*4,4)}, {c}")
    A(f"s_lshl_b32 s{tA}, s{sI}, 12")
    dtile_addr(50, 51, 11, tA)
    A("s_nop 6")
    for cb in range(4):
        A(f"ds_write_b128 v50, {vr(OC+4*cb,4)} offset:{OPP_L+cb*512}")
    gsync(C_OPP)
    ldone = e.label("L_sum5d")
    A("v_subrev_u32 v53, 256, v0")
    A("v_cmp_gt_u32 vcc, 224, v53")
    A(f"s_and_saveexec_b64 s[{sEX}:{sEX+1}], vcc")
    A(f"s_cbranch_execz {ldone}")
    A("v_cmp_le_u32 vcc, 112, v53")
    A("s_nop 1")
    A("v_cndmask_b32 v50, 0, 1, vcc")
    A("v_mul_u32_u24 v51, 112, v50")
    A("v_sub_u32 v51, v53, v51")
    A("v_lshlrev_b32 v52, 11, v50")
    A("v_lshl_add_u32 v52, v51, 4, v52")
    for w2 in range(4):
        A(f"ds_read_b128 {vr(160+4*w2,4)}, v52 offset:{OPP_L+w2*4096}")
    A("s_waitcnt lgkmcnt(0)")
    tree_sum4(160, 4)
    A("v_lshrrev_b32 v52, 2, v53")
    A("v_lshlrev_b32 v52, 13, v52")
    A("v_and_b32 v51, 3, v53")
    A("v_lshl_add_u32 v52, v51, 4, v52")
    A(f"s_mul_i32 s{tA}, s{sP}, {56*8192}")
    A(f"s_lshl_b32 s{tB}, s{sU}, 6")
    A(f"s_add_u32 s{tA}, s{tA}, s{tB}")
    A(f"s_add_u32 s{tA}, s{tA}, {OUTB_OFF}")
    A(f"buffer_store_dwordx4 v[160:163], v52, {srd(SWS)}, s{tA} offen sc1")
    A(f"{ldone}:")
    A(f"s_mov_b64 exec, s[{sEX}:{sEX+1}]")
    lx = e.label("L_x")
    A(f"s_cmp_lg_u32 s{sI}, 0")
    A(f"s_cbranch_scc1 {lx}")
    signal(C_OPP)
    A(f"{lx}:")
    stamp(10)
    A("L_fin:")
    stamp(11)
    if stamps:
        A(f"s_lshl_b32 s{tA}, s2, 3")
        A(f"s_add_u32 s{tA}, s{tA}, s{sW}")
        A(f"s_lshl_b32 s{tA}, s{tA}, 6")
        A(f"s_add_u32 s{tA}, s{tA}, {STAMP_OFF}")
        A("s_waitcnt lgkmcnt(0)")
        for i in range(3): A(f"ds_read_b128 {vr(32+4*i,4)}, v{vSTA} offset:{16*i}")
        A("s_waitcnt lgkmcnt(0)")
        A(f"v_mov_b32 v32, s{sST0}")
        A("v_mov_b32 v44, 0")
        A("s_mov_b64 exec, 1")
        for i in range(3):
            A(f"buffer_store_dwordx4 {vr(32+4*i,4)}, v44, {srd(SWS)}, s{tA} offen offset:{16*i}")
        A("s_mov_b64 exec, -1")
    A("L_end:")
    return e.text()

if __name__ == "__main__":
    import argparse
    ap = argparse.ArgumentParser()
    ap.add_argument("-o", default="k7.s")
    ap.add_argument("--stamps", action="store_true")
    ap.add_argument("--nt", action="store_true")
    ap.add_argument("--f2_sleep", type=int, default=2)
    ap.add_argument("--st_sleep", type=int, default=2)
    a = ap.parse_args()
    body = gen(stamps=a.stamps, nt=a.nt, f2_sleep=a.f2_sleep, st_sleep=a.st_sleep)
    open(a.o, "w").write(single(body, 256, 512, 163840, 256, 102, 256))
```

```python
import sys
from asmlib import *

class E:
    def __init__(s):
        s.l = []; s.lab = 0
    def __call__(s, t): s.l.append(t)
    def label(s, p="L"):
        s.lab += 1
        return f"{p}_{s.lab}"
    def text(s): return "\n".join(s.l)

QA_OFF = 0
QVB_OFF = 256 << 10
FL2_OFF = 384 << 10
FL3_OFF = 400 << 10
EPOCH_OFF = 512 << 10
ST_OFF = 576 << 10
INBOX_OFF = 1 << 20
IB_STRIDE = 40960
CTX_REL = 32768
F2_REL = 34816
STP_REL = 36864
OUTB_OFF = 20 << 20
STAMP_OFF = 32 << 20

R1 = 131072
SP_L = R1
QV_L = R1 + 16384
G1S = R1 + 17408
AL_L = G1S
OP_L = G1S + 1024
QP_L = G1S + 1024
CP_L = G1S + 5120
CNT_L = R1 + 30720
STL = CNT_L + 256
OPP_L = 0
C_QP, C_QV, C_SP, C_POIS, C_OP, C_CP, C_OPP, C_G0DONE, C_QAACK, C_F3 = range(10)

sW, sP, sH, sJ, sB, sKB, sU, sTAG = 3, 4, 5, 6, 7, 8, 9, 11
SWS = 12
tA, tB, sG, sIB, sOB, sH5, sEX, sTO, sA1, sA2, sI, sM, sST, sST0, sX1, sTP = 16, 17, 18, 19, 20, 21, 22, 24, 25, 26, 27, 28, 30, 32, 33, 34
SX, SCKV, SWQ, SWUK, SWUV, SWO, SOUT = 36, 40, 44, 48, 52, 56, 60
PB = 36
def srd(r): return f"s[{r}:{r+3}]"
vL, vN, vK = 1, 2, 3
vSEL = 4
vL16, vN16, vSTA = 12, 14, 15
def vr(a, n): return f"v[{a}:{a+n-1}]"

def gen(stamps=False, timeout=100000, nt=False, f2_sleep=2, st_sleep=2, dbgid=-1):
    e = E(); A = e
    NT = " nt" if nt else ""
    def stamp(idx):
        if not stamps: return
        A(f"s_memrealtime s[{sST}:{sST+1}]")
        A("s_waitcnt lgkmcnt(0)")
        if idx == 0:
            A(f"s_mov_b32 s{sST0}, s{sST}")
        else:
            A(f"v_mov_b32 v29, s{sST}")
            A("s_mov_b64 exec, 1")
            A(f"ds_write_b32 v{vSTA}, v29 offset:{4*idx}")
            A("s_mov_b64 exec, -1")
    def build_A(dst, xreg, tp):
        for p in range(4):
            A(f"v_perm_b32 v{dst+p}, v{xreg}, v{xreg}, v{vSEL+4*tp+p}")
    def tree_sum4(base, n):
        step = 1
        while step < n:
            for q in range(0, n, 2*step):
                if q + step >= n: continue
                a, b2 = base + 4*q, base + 4*(q+step)
                A(f"v_pk_add_f32 {vr(a,2)}, {vr(a,2)}, {vr(b2,2)}")
                A(f"v_pk_add_f32 {vr(a+2,2)}, {vr(a+2,2)}, {vr(b2+2,2)}")
            step *= 2
    def poll(name, check, reissue, sleep=0):
        lp = e.label("L_" + name); lpd = e.label("L_" + name + "d")
        A(f"s_mov_b32 s{sTO}, {timeout}")
        A(f"{lp}:")
        check()
        A(f"s_cbranch_scc1 {lpd}")
        A(f"s_sub_u32 s{sTO}, s{sTO}, 1")
        A(f"s_cmp_eq_u32 s{sTO}, 0")
        A(f"s_cbranch_scc1 {lpd}")
        if sleep: A(f"s_sleep {sleep}")
        reissue()
        A("s_waitcnt vmcnt(0)")
        A(f"s_branch {lp}")
        A(f"{lpd}:")
    def spoll(name, soff, nblk, base, tagregs, sleep=0):
        lp = e.label("L_" + name); lpd = e.label("L_" + name + "d")
        A(f"s_mov_b32 s{sTO}, {timeout}")
        A(f"{lp}:")
        for k in range(nblk):
            A(f"s_load_dwordx16 s[{base+16*k}:{base+16*k+15}], s[{SWS}:{SWS+1}], s{soff} offset:{64*k} glc")
        A("s_waitcnt lgkmcnt(0)")
        if tagregs == "all":
            n = 16 * nblk
            A(f"s_xor_b64 s[{sM}:{sM+1}], s[{base}:{base+1}], s[{sTP}:{sTP+1}]")
            for k in range(2, n, 2):
                A(f"s_xor_b64 s[{sEX}:{sEX+1}], s[{base+k}:{base+k+1}], s[{sTP}:{sTP+1}]")
                A(f"s_or_b64 s[{sM}:{sM+1}], s[{sM}:{sM+1}], s[{sEX}:{sEX+1}]")
            A(f"s_cmp_eq_u64 s[{sM}:{sM+1}], 0")
        else:
            A(f"s_xor_b32 s{sM}, s{tagregs[0]}, s{sTAG}")
            for r in tagregs[1:]:
                A(f"s_xor_b32 s{sM+1}, s{r}, s{sTAG}")
                A(f"s_or_b32 s{sM}, s{sM}, s{sM+1}")
            A(f"s_cmp_eq_u32 s{sM}, 0")
        A(f"s_cbranch_scc1 {lpd}")
        A(f"s_sub_u32 s{sTO}, s{sTO}, 1")
        A(f"s_cmp_eq_u32 s{sTO}, 0")
        A(f"s_cbranch_scc1 {lpd}")
        if sleep: A(f"s_sleep {sleep}")
        A(f"s_branch {lp}")
        A(f"{lpd}:")
    def poison_check(regs, tmp):
        def f():
            r = list(regs)
            A(f"v_max3_u32 v{tmp}, v{r[0]}, v{r[1]}, v{r[2]}"); r = r[3:]
            while len(r) >= 2:
                A(f"v_max3_u32 v{tmp}, v{tmp}, v{r[0]}, v{r[1]}"); r = r[2:]
            if r:
                A(f"v_max_u32 v{tmp}, v{tmp}, v{r[0]}")
            A(f"v_cmp_eq_u32 vcc, -1, v{tmp}")
            A("s_nop 1")
            A("s_cmp_eq_u64 vcc, 0")
        return f
    def signal(c, areg=30):
        A("s_mov_b64 exec, 1")
        A(f"ds_add_u32 v{areg}, v31 offset:{4*c}")
        A("s_mov_b64 exec, -1")
    def arrive(c):
        A("s_waitcnt lgkmcnt(0)")
        signal(c)
    def wait_cnt(c, n, areg=30, sleep=0):
        lp = e.label("L_w"); lpd = e.label("L_wd")
        A(f"s_mov_b32 s{sTO}, {timeout*20}")
        A(f"{lp}:")
        A(f"ds_read_b32 v29, v{areg} offset:{4*c}")
        A("s_waitcnt lgkmcnt(0)")
        A(f"v_readfirstlane_b32 s{tB}, v29")
        A(f"s_sub_u32 s{sTO}, s{sTO}, 1")
        A(f"s_cmp_eq_u32 s{sTO}, 0")
        A(f"s_cbranch_scc1 {lpd}")
        A(f"s_cmp_ge_u32 s{tB}, {n}")
        A(f"s_cbranch_scc1 {lpd}")
        if sleep: A(f"s_sleep {sleep}")
        A(f"s_branch {lp}")
        A(f"{lpd}:")
    def gsync(c):
        arrive(c); wait_cnt(c, 4)
    def selectors():
        A(f"v_and_b32 v17, 1, v{vN}")
        A(f"v_bfe_u32 v18, v{vN}, 1, 2")
        A("v_cmp_eq_u32 vcc, 1, v17")
        for tp in range(2):
            lo = 0x0C0C0000 | ((2*tp+1) << 8) | (2*tp)
            hi = ((2*tp+1) << 24) | ((2*tp) << 16) | 0x0C0C
            A(f"v_mov_b32 v24, 0x{lo:08x}")
            A(f"v_mov_b32 v25, 0x{hi:08x}")
            A(f"v_cndmask_b32 v{26+tp}, v24, v25, vcc")
        A(f"v_mov_b32 v24, 0x0c0c0c0c")
        for p in range(4):
            A(f"v_cmp_eq_u32 vcc, {p}, v18")
            A("s_nop 1")
            for tp in range(2):
                A(f"v_cndmask_b32 v{vSEL+4*tp+p}, v24, v{26+tp}, vcc")
    def mk_tag():
        A("s_waitcnt lgkmcnt(0)")
        A(f"s_mul_i32 s{sTAG}, s{sTAG}, 0x9E3779B1")
        A(f"s_add_u32 s{sTAG}, s{sTAG}, 0x7F4A7C15")
        A(f"s_mov_b32 s{sTP}, s{sTAG}")
        A(f"s_mov_b32 s{sTP+1}, s{sTAG}")
    def dtile_addr(dst, tmp, bshift, sbase):
        A(f"v_lshrrev_b32 v{dst}, 1, v{vK}")
        A(f"v_lshlrev_b32 v{dst}, {bshift}, v{dst}")
        A(f"v_lshl_add_u32 v{dst}, v{vN}, 5, v{dst}")
        A(f"v_and_b32 v{tmp}, 1, v{vK}")
        A(f"v_lshl_add_u32 v{dst}, v{tmp}, 4, v{dst}")
        A(f"v_add_u32 v{dst}, s{sbase}, v{dst}")

    A("s_cmp_ge_u32 s2, 256")
    A("s_cbranch_scc1 L_end")
    stamp(0)
    A(f"s_and_b32 s{tA}, s2, 7")
    A(f"s_lshr_b32 s{tB}, s2, 6")
    A(f"s_lshl_b32 s{sG}, s{tA}, 2")
    A(f"s_add_u32 s{sG}, s{sG}, s{tB}")
    A(f"s_lshr_b32 s{sP}, s{sG}, 4")
    A(f"s_mul_i32 s10, s{sP}, 48")
    A(f"s_load_dwordx2 s[{SWS}:{SWS+1}], s[0:1], 112")
    for r, off in ((SX, 0), (SWQ, 16), (SWUK, 24), (SCKV, 8), (SWUV, 32), (SWO, 40)):
        A(f"s_load_dwordx2 s[{r}:{r+1}], s[0:1], s10 offset:{off}")
    A(f"s_and_b32 s{sH}, s{sG}, 15")
    A(f"s_lshr_b32 s{tA}, s2, 3")
    A(f"s_and_b32 s{sJ}, s{tA}, 7")
    A(f"s_lshl_b32 s{sU}, s{sH}, 3")
    A(f"s_add_u32 s{sU}, s{sU}, s{sJ}")
    A(f"s_lshr_b32 s{sB}, s{sU}, 6")
    A(f"s_and_b32 s{sKB}, s{sU}, 63")
    A(f"v_and_b32 v{vL}, 63, v0")
    A(f"v_and_b32 v{vN}, 15, v0")
    A(f"v_bfe_u32 v{vK}, v0, 4, 2")
    A(f"v_lshrrev_b32 v13, 6, v0")
    A("s_nop 0")
    A(f"v_readfirstlane_b32 s{sW}, v13")
    for r, sz in ((SX, 1792), (SCKV, 16777216), (SWQ, 3670016), (SWUK, 8388608), (SWUV, 8388608), (SWO, 3670016), (SWS, 268435456)):
        A(f"s_mov_b32 s{r+2}, {sz}")
        A(f"s_mov_b32 s{r+3}, 0x00020000")
    A(f"s_and_b32 s{sI}, s{sW}, 3")
    A(f"v_lshlrev_b32 v{vL16}, 4, v{vL}")
    A(f"v_lshlrev_b32 v{vN16}, 4, v{vN}")
    A(f"v_mov_b32 v30, {CNT_L}")
    A("v_mov_b32 v31, 1")
    A(f"v_lshlrev_b32 v{vSTA}, 6, v13")
    A(f"v_add_u32 v{vSTA}, {STL}, v{vSTA}")
    A(f"v_lshlrev_b32 v13, 2, v{vL}")
    A(f"v_add_u32 v13, {CNT_L}, v13")
    A("v_mov_b32 v29, 0")
    A("ds_write_b32 v13, v29")
    A(f"s_lshl_b32 s{sH5}, s{sH}, 9")
    A(f"s_lshl_b32 s{sIB}, s{sP}, 7")
    A(f"s_add_u32 s{sIB}, s{sIB}, s{sU}")
    A(f"s_mul_i32 s{sIB}, s{sIB}, {IB_STRIDE}")
    A(f"s_add_u32 s{sIB}, s{sIB}, {INBOX_OFF}")
    A(f"s_mul_i32 s{sOB}, s{sP}, 56")
    A(f"s_add_u32 s{sOB}, s{sOB}, s{sU}")
    A(f"s_lshl_b32 s{sOB}, s{sOB}, 13")
    A(f"s_add_u32 s{sOB}, s{sOB}, {OUTB_OFF}")
    A(f"s_lshl_b32 s{tA}, s{sI}, 2")
    A(f"v_add_u32 v28, s{tA}, v30")
    A("s_waitcnt lgkmcnt(0)")
    A(f"s_lshl_b32 s{tA}, s{sP}, 8")
    A(f"s_add_u32 s{tA}, s{tA}, {EPOCH_OFF}")
    A(f"s_load_dword s{sTAG}, s[{SWS}:{SWS+1}], s{tA}")
    A(f"s_cmp_ge_u32 s{sW}, 4")
    A("s_cbranch_scc1 L_G1")

    A("s_setprio 2")
    WUK = 80; ACC = 176
    A(f"v_lshlrev_b32 v16, 13, v{vN}")
    A(f"v_lshl_add_u32 v16, v{vK}, 4, v16")
    A(f"s_lshl_b32 s{tA}, s{sJ}, 2")
    A(f"s_add_u32 s{tA}, s{tA}, s{sI}")
    A(f"s_lshl_b32 s{tA}, s{tA}, 18")
    A(f"s_add_u32 s{tA}, s{tA}, s{sH5}")
    A("s_barrier")
    for tl in range(2):
        if tl: A(f"s_add_u32 s{tA}, s{tA}, {16*8192}")
        for ks in range(8):
            A(f"buffer_load_dwordx4 {vr(WUK+(tl*8+ks)*4,4)}, v16, {srd(SWUK)}, s{tA} offen offset:{ks*64}{NT}")
    A("s_setprio 3")
    mk_tag()
    A(f"s_lshl_b32 s{sA1}, s{sG}, 11")
    A(f"s_lshl_b32 s{tA}, s{sI}, 9")
    A(f"s_add_u32 s{sA1}, s{sA1}, s{tA}")
    A(f"s_add_u32 s{sA1}, s{sA1}, {QVB_OFF}")
    for p in range(2):
        if p: A(f"s_add_u32 s{sA1}, s{sA1}, 256")
        spoll(f"qv{p}", sA1, 4, PB, [PB + 2*k + 1 for k in range(32)], sleep=1)
        for k in range(32):
            A(f"v_writelane_b32 v32, s{PB+2*k}, {32*p+k}")
    A("v_lshlrev_b32 v17, 1, v0")
    A(f"v_add_u32 v17, {QV_L}, v17")
    A("ds_write_b16 v17, v32")
    A("ds_write_b16_d16_hi v17, v32 offset:512")
    gsync(C_QV)
    A(f"v_and_b32 v17, 1, v{vN}")
    A("v_lshlrev_b32 v17, 9, v17")
    A(f"v_lshl_add_u32 v17, v{vK}, 4, v17")
    A(f"v_add_u32 v17, {QV_L}, v17")
    for ks in range(8):
        A(f"ds_read_b128 {vr(32+4*ks,4)}, v17 offset:{ks*64}")
    A("s_waitcnt lgkmcnt(0)")
    stamp(2)
    A("s_waitcnt vmcnt(0)")
    for ks in range(8):
        for tl in range(2):
            c = "0" if ks == 0 else vr(ACC+4*tl, 4)
            A(f"v_mfma_f32_16x16x32_bf16 {vr(ACC+4*tl,4)}, {vr(WUK+(tl*8+ks)*4,4)}, {vr(32+4*ks,4)}, {c}")
    A(f"v_lshlrev_b32 v17, 15, v{vN}")
    A(f"v_lshl_add_u32 v17, v{vK}, 3, v17")
    A(f"s_lshl_b32 s{tA}, s{sP}, 16")
    A(f"s_lshl_b32 s{tB}, s{sH}, 11")
    A(f"s_add_u32 s{tA}, s{tA}, s{tB}")
    A(f"s_lshl_b32 s{tB}, s{sJ}, 8")
    A(f"s_add_u32 s{tA}, s{tA}, s{tB}")
    A(f"s_lshl_b32 s{tB}, s{sI}, 6")
    A(f"s_add_u32 s{tA}, s{tA}, s{tB}")
    A("v_mov_b32 v32, 0x3db8aa3b")
    A("s_nop 1")
    for r in range(8):
        A(f"v_mul_f32 v{ACC+r}, v32, v{ACC+r}")
    for tl in range(2):
        A(f"v_cvt_pk_bf16_f32 v{ACC+8+2*tl}, v{ACC+4*tl}, v{ACC+4*tl+1}")
        A(f"v_cvt_pk_bf16_f32 v{ACC+9+2*tl}, v{ACC+4*tl+2}, v{ACC+4*tl+3}")
    A(f"v_cmp_gt_u32 vcc, 2, v{vN}")
    A(f"s_and_saveexec_b64 s[{sEX}:{sEX+1}], vcc")
    for tl in range(2):
        A(f"buffer_store_dwordx2 {vr(ACC+8+2*tl,2)}, v17, {srd(SWS)}, s{tA} offen offset:{32*tl} sc1")
    A(f"s_mov_b64 exec, s[{sEX}:{sEX+1}]")
    QAr = 32; CA = 64; SA = 192; AD = 208; TD = 20
    A(f"s_lshl_b32 s{sX1}, s{sI}, 15")
    for ks in range(4):
        A(f"v_add_u32 v{AD+ks}, {4*ks}, v{vK}")
        A(f"v_xor_b32 v{AD+ks}, v{AD+ks}, v{vN}")
        A(f"v_lshlrev_b32 v{AD+ks}, 4, v{AD+ks}")
        A(f"v_lshl_add_u32 v{AD+ks}, v{vN}, 8, v{AD+ks}")
        A(f"v_add_u32 v{AD+ks}, s{sX1}, v{AD+ks}")
    A(f"v_lshrrev_b32 v{AD+4}, 2, v{vN}")
    A(f"v_and_b32 v{AD+5}, 3, v{vN}")
    A(f"v_lshl_add_u32 v{AD+6}, v{vK}, 2, v{AD+4}")
    A(f"v_lshlrev_b32 v{AD+6}, 8, v{AD+6}")
    A(f"v_add_u32 v{AD+6}, s{sX1}, v{AD+6}")
    A(f"v_xor_b32 v{AD+7}, v{AD+5}, v{vK}")
    A(f"v_lshl_add_u32 v{AD+6}, v{AD+7}, 6, v{AD+6}")
    A(f"v_and_b32 v{AD+5}, 1, v{AD+5}")
    for t in range(8):
        tau, hb = t >> 1, t & 1
        A(f"v_xor_b32 v{AD+7}, {tau}, v{AD+4}")
        A(f"v_lshl_add_u32 v{TD+t}, v{AD+7}, 4, v{AD+6}")
        A(f"v_xor_b32 v{AD+7}, {hb}, v{AD+5}")
        A(f"v_lshl_add_u32 v{TD+t}, v{AD+7}, 3, v{TD+t}")
    wait_cnt(C_POIS, 4)
    A("s_waitcnt vmcnt(0)")
    A("s_mov_b64 exec, 1")
    A(f"ds_add_rtn_u32 v29, v30, v31 offset:{4*C_QAACK}")
    A("s_waitcnt lgkmcnt(0)")
    A(f"v_readfirstlane_b32 s{tB}, v29")
    lnf = e.label("L_nof2")
    A(f"s_cmp_lg_u32 s{tB}, 3")
    A(f"s_cbranch_scc1 {lnf}")
    A("s_mov_b64 exec, -1")
    A(f"s_mul_i32 s{tA}, s{sP}, {128*IB_STRIDE}")
    A(f"s_lshl_b32 s{tB}, s{sJ}, 6")
    A(f"s_add_u32 s{tA}, s{tA}, s{tB}")
    A(f"s_lshl_b32 s{tB}, s{sH}, 2")
    A(f"s_add_u32 s{tA}, s{tA}, s{tB}")
    A(f"s_add_u32 s{tA}, s{tA}, {INBOX_OFF + F2_REL}")
    A(f"s_mov_b32 s{tB}, {IB_STRIDE}")
    A(f"v_mul_lo_u32 v17, v{vL}, s{tB}")
    A(f"v_mov_b32 v29, s{sTAG}")
    A(f"buffer_store_dword v29, v17, {srd(SWS)}, s{tA} offen sc1")
    A(f"s_add_u32 s{tA}, s{tA}, {64*IB_STRIDE}")
    A(f"buffer_store_dword v29, v17, {srd(SWS)}, s{tA} offen sc1")
    A(f"{lnf}:")
    A("s_mov_b64 exec, -1")
    stamp(3)
    A(f"s_lshl_b32 s{tA}, s{sI}, 7")
    A(f"s_add_u32 s{sA1}, s{sIB}, s{tA}")
    A(f"s_add_u32 s{sA1}, s{sA1}, {F2_REL}")
    A(f"v_lshlrev_b32 v18, 11, v{vN}")
    A(f"v_lshl_add_u32 v18, v{vK}, 4, v18")
    A(f"s_lshl_b32 s{sA2}, s{sP}, 1")
    A(f"s_add_u32 s{sA2}, s{sA2}, s{sB}")
    A(f"s_lshl_b32 s{sA2}, s{sA2}, 15")
    A(f"s_lshl_b32 s{tA}, s{sI}, 9")
    A(f"s_add_u32 s{sA2}, s{sA2}, s{tA}")
    spoll("f2", sA1, 2, PB, "all", sleep=f2_sleep)
    for k8 in range(8):
        A(f"buffer_load_dwordx4 {vr(QAr+4*k8,4)}, v18, {srd(SWS)}, s{sA2} offen offset:{k8*64} sc1")
    stamp(5)
    wait_cnt(16, 1, areg=28, sleep=1)
    stamp(4)
    for cr in range(2):
        for kt in range(4):
            for ks in range(4):
                A(f"ds_read_b128 {vr(CA+cr*64+(kt*4+ks)*4,4)}, v{AD+ks} offset:{cr*16384+kt*4096}")
    A("s_waitcnt vmcnt(0) lgkmcnt(0)")
    for cr in range(2):
        for ks in range(4):
            for kt in range(4):
                c = "0" if (cr == 0 and ks == 0) else vr(SA+4*kt, 4)
                A(f"v_mfma_f32_16x16x32_bf16 {vr(SA+4*kt,4)}, {vr(CA+cr*64+(kt*4+ks)*4,4)}, {vr(QAr+(cr*4+ks)*4,4)}, {c}")
    A(f"s_lshl_b32 s{tA}, s{sI}, 12")
    A(f"s_add_u32 s{tA}, s{tA}, {SP_L}")
    A(f"v_add_u32 v17, s{tA}, v{vL16}")
    A("s_nop 7")
    for kt in range(4):
        A(f"ds_write_b128 v17, {vr(SA+4*kt,4)} offset:{kt*1024}")
    arrive(C_SP)
    stamp(7)
    CT = 64
    for cr in range(2):
        for t in range(8):
            for ks2 in range(2):
                for u in range(2):
                    A(f"ds_read_b64_tr_b16 {vr(CT+cr*64+(t*2+ks2)*4+2*u,2)}, v{TD+t} offset:{cr*16384+(32*ks2+16*u)*256}")
    wait_cnt(C_SP, 4)
    stamp(8)
    A(f"v_add_u32 v17, {SP_L}, v{vL16}")
    for w2 in range(4):
        for kt in range(4):
            A(f"ds_read_b128 {vr(192+w2*16+kt*4,4)}, v17 offset:{w2*4096+kt*1024}")
    A("s_waitcnt lgkmcnt(0)")
    for r in range(0, 16, 2):
        A(f"v_pk_add_f32 {vr(192+r,2)}, {vr(192+r,2)}, {vr(208+r,2)}")
        A(f"v_pk_add_f32 {vr(224+r,2)}, {vr(224+r,2)}, {vr(240+r,2)}")
    for r in range(0, 16, 2):
        A(f"v_pk_add_f32 {vr(192+r,2)}, {vr(192+r,2)}, {vr(224+r,2)}")
    A(f"v_max3_f32 v48, v{SA}, v{SA+1}, v{SA+2}")
    for i in range(3, 15, 2):
        A(f"v_max3_f32 v48, v48, v{SA+i}, v{SA+i+1}")
    A(f"v_max_f32 v48, v48, v{SA+15}")
    A("v_mov_b32 v49, v48"); A("s_nop 1"); A("v_permlane32_swap_b32 v48, v49"); A("v_max_f32 v48, v48, v49")
    A("v_mov_b32 v49, v48"); A("s_nop 1"); A("v_permlane16_swap_b32 v48, v49"); A("v_max_f32 v48, v48, v49")
    for i in range(16): A(f"v_sub_f32 v{SA+i}, v{SA+i}, v48")
    for i in range(16): A(f"v_exp_f32 v{SA+i}, v{SA+i}")
    A("s_nop 0")
    for ks2 in range(2):
        for q in range(4):
            s = SA + 8*ks2 + 2*q
            A(f"v_cvt_pk_bf16_f32 v{32+4*ks2+q}, v{s}, v{s+1}")
    A(f"v_add_f32 v49, v{SA}, v{SA+1}")
    for i in range(2, 16): A(f"v_add_f32 v49, v49, v{SA+i}")
    OA = 192
    A("s_nop 1")
    for cr in range(2):
        for t in range(8):
            A(f"v_mfma_f32_16x16x32_bf16 {vr(OA+cr*32+4*t,4)}, {vr(CT+cr*64+(t*2)*4,4)}, v[32:35], 0")
        for t in range(8):
            A(f"v_mfma_f32_16x16x32_bf16 {vr(OA+cr*32+4*t,4)}, {vr(CT+cr*64+(t*2+1)*4,4)}, v[36:39], {vr(OA+cr*32+4*t,4)}")
    signal(C_G0DONE)
    stamp(9)
    A("v_mov_b32 v50, v49"); A("s_nop 1"); A("v_permlane32_swap_b32 v49, v50"); A("v_add_f32 v49, v49, v50")
    A("v_mov_b32 v50, v49"); A("s_nop 1"); A("v_permlane16_swap_b32 v49, v50"); A("v_add_f32 v49, v49, v50")
    A(f"s_mov_b32 s{tA}, {IB_STRIDE*8}")
    A(f"v_mul_lo_u32 v17, v{vN}, s{tA}")
    A(f"v_lshl_add_u32 v18, v{vK}, 4, v17")
    A(f"s_lshl_b32 s{tA}, s{sP}, 7")
    A(f"s_lshl_b32 s{tB}, s{sI}, 1")
    A(f"s_add_u32 s{tA}, s{tA}, s{tB}")
    A(f"s_mul_i32 s{tA}, s{tA}, {IB_STRIDE}")
    A(f"s_add_u32 s{tA}, s{tA}, {INBOX_OFF}")
    A(f"s_lshl_b32 s{tB}, s{sU}, 8")
    A(f"s_add_u32 s{sA1}, s{tA}, s{tB}")
    for cr in range(2):
        if cr:
            A(f"s_add_u32 s{sA1}, s{sA1}, {IB_STRIDE}")
        for tau in range(4):
            d = 64 + cr*16 + 4*tau
            a, b2 = OA + cr*32 + 8*tau, OA + cr*32 + 8*tau + 4
            A(f"v_cvt_pk_bf16_f32 v{d}, v{a}, v{a+1}")
            A(f"v_cvt_pk_bf16_f32 v{d+1}, v{a+2}, v{a+3}")
            A(f"v_cvt_pk_bf16_f32 v{d+2}, v{b2}, v{b2+1}")
            A(f"v_cvt_pk_bf16_f32 v{d+3}, v{b2+2}, v{b2+3}")
            A(f"buffer_store_dwordx4 {vr(d,4)}, v18, {srd(SWS)}, s{sA1} offen offset:{tau*64} sc1")
    stamp(6)
    A(f"s_mov_b32 s{tB}, {IB_STRIDE}")
    A(f"v_mul_lo_u32 v16, v{vK}, s{tB}")
    A("v_add_u32 v17, v17, v16")
    A(f"s_lshl_b32 s{tB}, s{sU}, 4")
    A(f"s_add_u32 s{tA}, s{tA}, s{tB}")
    A(f"s_add_u32 s{tA}, s{tA}, {STP_REL}")
    A(f"v_mov_b32 v50, s{sTAG}")
    A("v_mov_b32 v51, 0")
    A("s_waitcnt vmcnt(0)")
    A("s_mov_b32 exec_hi, 0")
    A(f"buffer_store_dwordx4 v[48:51], v17, {srd(SWS)}, s{tA} offen sc1")
    A("s_mov_b64 exec, -1")
    signal(C_F3)
    stamp(10)
    A(f"s_cmp_ge_u32 s{sU}, 56")
    A("s_cbranch_scc1 L_fin")
    A(f"s_cmp_lg_u32 s{sI}, 0")
    A("s_cbranch_scc1 L_fin")
    A(f"s_load_dwordx2 s[{SOUT}:{SOUT+1}], s[0:1], 96")
    A(f"s_mov_b32 s{SOUT+2}, 3584")
    A(f"s_mov_b32 s{SOUT+3}, 0x00020000")
    wait_cnt(C_OPP, 5, sleep=1)
    A(f"s_add_u32 s{tA}, s{sOB}, 4096")
    def ob_loads():
        for i in range(4):
            A(f"buffer_load_dwordx4 {vr(32+4*i,4)}, v{vL16}, {srd(SWS)}, s{sOB} offen offset:{i*1024} sc1")
        for i in range(4):
            A(f"buffer_load_dwordx4 {vr(48+4*i,4)}, v{vL16}, {srd(SWS)}, s{tA} offen offset:{i*1024} sc1")
    ob_loads()
    A("s_waitcnt vmcnt(0)")
    poll("ob", poison_check(range(32, 64), 64), ob_loads)
    tree_sum4(32, 8)
    for rot in (4, 8):
        A("s_nop 1")
        for r in range(32, 36):
            A(f"v_add_f32_dpp v{r}, v{r}, v{r} row_ror:{rot} row_mask:0xf bank_mask:0xf")
    for r in range(32, 36):
        A(f"v_mov_b32 v40, v{r}"); A("s_nop 1"); A(f"v_permlane16_swap_b32 v{r}, v40"); A(f"v_add_f32 v{r}, v{r}, v40")
        A(f"v_mov_b32 v40, v{r}"); A("s_nop 1"); A(f"v_permlane32_swap_b32 v{r}, v40"); A(f"v_add_f32 v{r}, v{r}, v40")
    A("v_cvt_pk_bf16_f32 v36, v32, v33")
    A("v_cvt_pk_bf16_f32 v37, v34, v35")
    A(f"s_cmp_ge_u32 s{sU}, 28")
    A(f"s_cselect_b32 s{tA}, 896, 0")
    A(f"s_mul_i32 s{tB}, s{sP}, 896")
    A(f"s_add_u32 s{tA}, s{tA}, s{tB}")
    A(f"s_lshl_b32 s{tB}, s{sU}, 5")
    A(f"s_add_u32 s{tA}, s{tA}, s{tB}")
    A(f"v_lshlrev_b32 v40, 3, v{vL}")
    A("s_mov_b64 exec, 15")
    A(f"buffer_store_dwordx2 v[36:37], v40, {srd(SOUT)}, s{tA} offen")
    A("s_mov_b64 exec, -1")
    A(f"s_cmp_lg_u32 s{sU}, 0")
    A("s_cbranch_scc1 L_fin")
    A(f"s_lshl_b32 s{tA}, s{sP}, 8")
    A(f"s_add_u32 s{tA}, s{tA}, {EPOCH_OFF}")
    A(f"v_mov_b32 v40, s{sTAG}")
    A("v_mov_b32 v41, 0")
    A("s_mov_b64 exec, 1")
    A(f"buffer_store_dword v40, v41, {srd(SWS)}, s{tA} offen sc1")
    A("s_mov_b64 exec, -1")
    A("s_branch L_fin")

    A("L_G1:")
    A("s_setprio 3")
    vX = 32; WQ = 48; AOP = 192
    A(f"v_lshrrev_b32 v13, 3, v{vN}")
    A("v_mul_u32_u24 v13, 896, v13")
    A(f"v_mad_u32_u24 v13, v{vK}, 56, v13")
    A(f"s_mul_i32 s{tA}, s{sI}, 224")
    for q in range(3):
        A(f"buffer_load_dwordx4 {vr(vX+4*q,4)}, v13, {srd(SX)}, s{tA} offen offset:{16*q}")
    A(f"buffer_load_dwordx2 {vr(vX+12,2)}, v13, {srd(SX)}, s{tA} offen offset:48")
    A(f"v_lshrrev_b32 v19, 2, v{vN}")
    A(f"v_mad_u32_u24 v19, v{vK}, 28, v19")
    A("v_lshlrev_b32 v19, 13, v19")
    A(f"v_and_b32 v16, 3, v{vN}")
    A("v_lshl_add_u32 v19, v16, 4, v19")
    A(f"s_mul_i32 s{tA}, s{sI}, {112*8192}")
    A(f"s_add_u32 s{tA}, s{tA}, s{sH5}")
    A(f"s_lshl_b32 s{tB}, s{sJ}, 6")
    A(f"s_add_u32 s{tA}, s{tA}, s{tB}")
    for t in range(7):
        if t > 0: A(f"s_add_u32 s{tA}, s{tA}, {4*8192}")
        A(f"buffer_load_dwordx4 {vr(WQ+4*t,4)}, v19, {srd(SWQ)}, s{tA} offen{NT}")
    A("s_barrier")
    selectors()
    mk_tag()
    A("s_waitcnt vmcnt(6)")
    seq = [(t, a) for t in range(7) for a in range(4)]
    build_A(AOP, vX, 0)
    for n, (t, a) in enumerate(seq):
        cur = AOP + 4*(n & 1)
        if n + 1 < len(seq):
            t2, a2 = seq[n+1]
            build_A(AOP + 4*((n+1) & 1), vX + ((4*t2+a2) >> 1), a2 & 1)
        else:
            A("s_nop 1")
        if a == 0 and t > 0:
            A(f"s_waitcnt vmcnt({6 - t})")
        c = "0" if t == 0 else vr(ACC+4*a, 4)
        A(f"v_mfma_f32_16x16x32_bf16 {vr(ACC+4*a,4)}, {vr(cur,4)}, {vr(WQ+4*t,4)}, {c}")
    A(f"v_lshrrev_b32 v17, 2, v{vN}")
    A("s_nop 7")
    for a in range(1, 4):
        A(f"v_cmp_eq_u32 vcc, {a}, v17")
        A("s_nop 1")
        for r in range(4):
            A(f"v_cndmask_b32 v{ACC+r}, v{ACC+r}, v{ACC+4*a+r}, vcc")
    for rot in (4, 8):
        A("s_nop 1")
        for r in range(4):
            A(f"v_add_f32_dpp v{ACC+r}, v{ACC+r}, v{ACC+r} row_ror:{rot} row_mask:0xf bank_mask:0xf")
    A(f"s_lshl_b32 s{tA}, s{sI}, 8")
    A(f"s_add_u32 s{tA}, s{tA}, {QP_L}")
    dtile_addr(17, 18, 7, tA)
    A(f"v_cmp_gt_u32 vcc, 4, v{vN}")
    A(f"s_and_saveexec_b64 s[{sEX}:{sEX+1}], vcc")
    A(f"ds_write_b128 v17, {vr(ACC,4)}")
    A(f"s_mov_b64 exec, s[{sEX}:{sEX+1}]")
    arrive(C_QP)
    lq0 = e.label("L_q0")
    A(f"s_cmp_lg_u32 s{sI}, 0")
    A(f"s_cbranch_scc1 {lq0}")
    wait_cnt(C_QP, 4)
    A(f"v_lshlrev_b32 v17, 2, v{vL}")
    A(f"v_add_u32 v17, {QP_L}, v17")
    for w2 in range(4):
        A(f"ds_read_b32 v{32+w2}, v17 offset:{w2*256}")
    A("s_waitcnt lgkmcnt(0)")
    A("v_add_f32 v32, v32, v33"); A("v_add_f32 v34, v34, v35"); A("v_add_f32 v32, v32, v34")
    A("v_mov_b32 v33, v32"); A("s_nop 1")
    A("v_permlane32_swap_b32 v32, v33")
    A("s_nop 0")
    A("v_cvt_pk_bf16_f32 v34, v32, v33")
    A(f"v_mov_b32 v35, s{sTAG}")
    A(f"v_lshlrev_b32 v17, 3, v{vL}")
    A(f"s_lshl_b32 s{tA}, s{sG}, 11")
    A(f"s_lshl_b32 s{tB}, s{sJ}, 8")
    A(f"s_add_u32 s{tA}, s{tA}, s{tB}")
    A(f"s_add_u32 s{tA}, s{tA}, {QVB_OFF}")
    A("s_mov_b32 exec_hi, 0")
    A(f"buffer_store_dwordx2 v[34:35], v17, {srd(SWS)}, s{tA} offen sc1")
    A("s_mov_b64 exec, -1")
    A(f"{lq0}:")
    stamp(2)
    A("s_setprio 0")
    for i in range(4): A(f"v_mov_b32 v{40+i}, -1")
    lp1 = e.label("L_p1")
    A(f"s_cmp_ge_u32 s{sI}, 2")
    A(f"s_cbranch_scc1 {lp1}")
    A(f"s_lshl_b32 s{tA}, s{sI}, 10")
    A(f"s_add_u32 s{tA}, s{tA}, s{sIB}")
    A(f"s_add_u32 s{tA}, s{tA}, {CTX_REL}")
    A(f"buffer_store_dwordx4 v[40:43], v{vL16}, {srd(SWS)}, s{tA} offen sc1")
    A(f"{lp1}:")
    lp2 = e.label("L_p2")
    A(f"s_cmp_ge_u32 s{sU}, 56")
    A(f"s_cbranch_scc1 {lp2}")
    A(f"s_lshl_b32 s{tA}, s{sI}, 11")
    A(f"s_add_u32 s{tA}, s{tA}, s{sOB}")
    A(f"buffer_store_dwordx4 v[40:43], v{vL16}, {srd(SWS)}, s{tA} offen sc1")
    A(f"buffer_store_dwordx4 v[40:43], v{vL16}, {srd(SWS)}, s{tA} offen offset:1024 sc1")
    A(f"{lp2}:")
    VC = 36
    for tt in range(4):
        A(f"v_add_u32 v{VC+tt}, {4*tt}, v{vK}")
        A(f"v_xor_b32 v{VC+tt}, v{VC+tt}, v{vN}")
        A(f"v_lshlrev_b32 v{VC+tt}, 4, v{VC+tt}")
        A(f"v_lshl_add_u32 v{VC+tt}, v{vK}, 11, v{VC+tt}")
    A(f"s_lshl_b32 s{sA1}, s{sB}, 23")
    A(f"s_lshl_b32 s{tA}, s{sKB}, 17")
    A(f"s_add_u32 s{sA1}, s{sA1}, s{tA}")
    A(f"s_lshl_b32 s{tA}, s{sI}, 9")
    A(f"s_add_u32 s{sA1}, s{sA1}, s{tA}")
    A(f"s_lshl_b32 s{sX1}, s{sI}, 15")
    nd = 0
    for t in range(16):
        for cr in range(2):
            A(f"s_add_u32 s{tA}, s{sX1}, {cr*16384 + t*1024}")
            A(f"s_mov_b32 m0, s{tA}")
            A(f"s_add_u32 s{tB}, s{sA1}, {t*4*2048 + cr*256}")
            A(f"buffer_load_dwordx4 v{VC+(t&3)}, {srd(SCKV)}, s{tB} offen{NT} lds")
            nd += 1
            if nd == 4:
                A("s_waitcnt vmcnt(4)")
                signal(C_POIS)
    stamp(1)
    WUV = 64; WO = 128
    A(f"v_lshrrev_b32 v17, 1, v{vK}")
    A(f"v_and_b32 v19, 1, v{vK}")
    A("v_xor_b32 v19, v19, v17")
    A(f"v_lshl_add_u32 v19, v19, 15, v{vN16}")
    A("v_lshl_add_u32 v19, v17, 18, v19")
    A(f"s_lshl_b32 s{sA1}, s{sJ}, 7")
    A(f"s_lshl_b32 s{tA}, s{sI}, 3")
    A(f"s_add_u32 s{sA1}, s{sA1}, s{tA}")
    A(f"s_lshl_b32 s{sA1}, s{sA1}, 13")
    A(f"s_add_u32 s{sA1}, s{sA1}, s{sH5}")
    for q in range(8):
        A(f"s_add_u32 s{tA}, s{sA1}, {(64*(q>>2) + (q&3))*8192}")
        for dh in range(2):
            A(f"buffer_load_dwordx4 {vr(WUV+(2*q+dh)*4,4)}, v19, {srd(SWUV)}, s{tA} offen offset:{dh*256}{NT}")
        if q == 3:
            A("s_waitcnt vmcnt(8)")
            signal(16, areg=28)
            stamp(4)
    A("v_mov_b32 v17, 1792")
    A(f"v_mad_u32_u24 v17, v{vK}, v17, v{vN16}")
    A(f"s_lshl_b32 s{tA}, s{sU}, 2")
    A(f"s_add_u32 s{tA}, s{tA}, s{sI}")
    A(f"s_mul_i32 s{tA}, s{tA}, {8*896}")
    A(f"v_cmp_gt_u32 s[{sM}:{sM+1}], 8, v{vN}")
    for q in range(2):
        if q: A(f"s_add_u32 s{tA}, s{tA}, 896")
        for cb in range(4):
            if cb == 3: A(f"s_mov_b64 exec, s[{sM}:{sM+1}]")
            A(f"buffer_load_dwordx4 {vr(WO+(4*q+cb)*4,4)}, v17, {srd(SWO)}, s{tA} offen offset:{cb*256}{NT}")
            if cb == 3: A("s_mov_b64 exec, -1")
    A("s_setprio 2")
    IB = 160
    A(f"v_lshl_add_u32 v18, v{vK}, 11, v{vN16}")
    A(f"s_lshl_b32 s{sA2}, s{sI}, 13")
    A(f"s_add_u32 s{sA2}, s{sA2}, s{sIB}")
    A(f"s_lshr_b32 s{sX1}, s{sI}, 1")
    A(f"s_lshl_b32 s{sX1}, s{sX1}, 10")
    A(f"s_add_u32 s{sX1}, s{sX1}, s{sIB}")
    A(f"s_add_u32 s{sX1}, s{sX1}, {STP_REL}")
    def st_loads():
        A(f"buffer_load_dwordx3 v[48:50], v{vL16}, {srd(SWS)}, s{sX1} offen sc1")
    def st_check():
        A(f"v_cmp_ne_u32 vcc, s{sTAG}, v50")
        A("s_nop 1")
        A("s_cmp_eq_u64 vcc, 0")
    wait_cnt(C_F3, 4, sleep=2)
    stamp(5)
    st_loads()
    A("s_waitcnt vmcnt(0)")
    poll("st", st_check, st_loads, sleep=st_sleep)
    stamp(6)
    for q in range(8):
        A(f"buffer_load_dwordx4 {vr(IB+4*q,4)}, v18, {srd(SWS)}, s{sA2} offen offset:{q*256} sc1")
    def wave_reduce(op, r, t):
        for dpp in ("quad_perm:[1,0,3,2]", "quad_perm:[2,3,0,1]", "row_half_mirror", "row_mirror"):
            A("s_nop 1")
            A(f"{op}_dpp v{r}, v{r}, v{r} {dpp} row_mask:0xf bank_mask:0xf")
        A(f"v_mov_b32 v{t}, v{r}"); A("s_nop 1"); A(f"v_permlane16_swap_b32 v{r}, v{t}"); A(f"{op} v{r}, v{r}, v{t}")
        A(f"v_mov_b32 v{t}, v{r}"); A("s_nop 1"); A(f"v_permlane32_swap_b32 v{r}, v{t}"); A(f"{op} v{r}, v{r}, v{t}")
    A("v_mov_b32 v50, v48")
    wave_reduce("v_max_f32", 50, 51)
    A("v_sub_f32 v48, v48, v50")
    A("v_exp_f32 v48, v48")
    A("s_nop 0")
    A("v_mul_f32 v49, v49, v48")
    wave_reduce("v_add_f32", 49, 51)
    A("v_rcp_f32 v49, v49")
    A("s_nop 0")
    A("v_mul_f32 v48, v48, v49")
    A(f"s_lshl_b32 s{tB}, s{sI}, 8")
    A(f"s_add_u32 s{tB}, s{tB}, {AL_L}")
    A(f"v_lshlrev_b32 v50, 2, v{vL}")
    A(f"v_add_u32 v50, s{tB}, v50")
    A("ds_write_b32 v50, v48")
    A(f"s_and_b32 s{tA}, s{sI}, 1")
    A(f"s_lshl_b32 s{tA}, s{tA}, 7")
    A(f"s_add_u32 s{tB}, s{tB}, s{tA}")
    A(f"v_lshlrev_b32 v50, 5, v{vK}")
    A(f"v_add_u32 v50, s{tB}, v50")
    A("s_waitcnt lgkmcnt(0)")
    A("ds_read_b128 v[40:43], v50")
    A("ds_read_b128 v[44:47], v50 offset:16")
    A("s_waitcnt lgkmcnt(0)")
    for q in range(4):
        A(f"v_cvt_pk_bf16_f32 v{52+q}, v{40+2*q}, v{41+2*q}")
    for q in range(4):
        A(f"v_lshlrev_b32 v60, 16, v{52+q}"); A(f"v_and_b32 v61, 0xffff0000, v{52+q}")
        A(f"v_sub_f32 v{40+2*q}, v{40+2*q}, v60"); A(f"v_sub_f32 v{41+2*q}, v{41+2*q}, v61")
        A(f"v_cvt_pk_bf16_f32 v{56+q}, v{40+2*q}, v{41+2*q}")
    A(f"v_cmp_lt_u32 vcc, 7, v{vN}")
    A("s_nop 1")
    for q in range(4):
        A(f"v_cndmask_b32 v{52+q}, v{52+q}, v{56+q}, vcc")
    AOPS = 192
    for q in range(8): build_A(AOPS + 4*q, 52 + (q >> 1), q & 1)
    A("s_waitcnt vmcnt(0)")
    stamp(7)
    for q in range(8):
        c = "0" if q == 0 else "v[40:43]"
        A(f"v_mfma_f32_16x16x32_bf16 v[40:43], {vr(AOPS+4*q,4)}, {vr(IB+4*q,4)}, {c}")
    A(f"s_lshl_b32 s{tA}, s{sI}, 10")
    A(f"s_add_u32 s{tA}, s{tA}, {OP_L}")
    dtile_addr(50, 51, 9, tA)
    A("s_nop 4")
    A("ds_write_b128 v50, v[40:43]")
    gsync(C_OP)
    A(f"v_lshrrev_b32 v19, 3, v{vN}")
    A("v_lshlrev_b32 v19, 11, v19")
    A(f"v_lshl_add_u32 v19, v{vK}, 4, v19")
    A(f"s_lshl_b32 s{tB}, s{sI}, 7")
    A(f"s_add_u32 s{tB}, s{tB}, {OP_L}")
    A(f"v_add_u32 v19, s{tB}, v19")
    for hh in range(2):
        for q in range(4):
            A(f"ds_read_b128 {vr(160+hh*16+4*q,4)}, v19 offset:{q*512+hh*64}")
    A("s_waitcnt lgkmcnt(0)")
    tree_sum4(160, 4); tree_sum4(176, 4)
    A("v_cvt_pk_bf16_f32 v52, v160, v161"); A("v_cvt_pk_bf16_f32 v53, v162, v163")
    A("v_cvt_pk_bf16_f32 v54, v176, v177"); A("v_cvt_pk_bf16_f32 v55, v178, v179")
    for q in range(8): build_A(AOPS + 4*q, 52 + (q >> 1), q & 1)
    A("s_nop 1")
    for q in range(8):
        for dh in range(2):
            c = "0" if q == 0 else vr(40+4*dh, 4)
            A(f"v_mfma_f32_16x16x32_bf16 {vr(40+4*dh,4)}, {vr(AOPS+4*q,4)}, {vr(WUV+(2*q+dh)*4,4)}, {c}")
    A(f"s_lshl_b32 s{tA}, s{sI}, 11")
    A(f"s_add_u32 s{tA}, s{tA}, {CP_L}")
    dtile_addr(50, 51, 10, tA)
    A("s_nop 6")
    A("ds_write_b128 v50, v[40:43]")
    A("ds_write_b128 v50, v[44:47] offset:512")
    arrive(C_CP)
    lc = e.label("L_noctx")
    A(f"s_cmp_ge_u32 s{sI}, 2")
    A(f"s_cbranch_scc1 {lc}")
    wait_cnt(C_CP, 4)
    A(f"s_lshl_b32 s{tB}, s{sI}, 10")
    A(f"s_add_u32 s{tB}, s{tB}, {CP_L}")
    A(f"v_add_u32 v19, s{tB}, v{vL16}")
    for w2 in range(4):
        A(f"ds_read_b128 {vr(160+4*w2,4)}, v19 offset:{w2*2048}")
    A("s_waitcnt lgkmcnt(0)")
    tree_sum4(160, 4)
    A(f"v_lshrrev_b32 v50, 3, v{vL}")
    A(f"s_mov_b32 s{tA}, {IB_STRIDE}")
    A(f"v_mul_lo_u32 v50, v50, s{tA}")
    A(f"v_and_b32 v51, 7, v{vL}")
    A("v_lshl_add_u32 v50, v51, 4, v50")
    A(f"s_mul_i32 s{tA}, s{sG}, {8*IB_STRIDE}")
    A(f"s_add_u32 s{tA}, s{tA}, {INBOX_OFF + CTX_REL}")
    A(f"s_lshl_b32 s{tB}, s{sJ}, 8")
    A(f"s_add_u32 s{tA}, s{tA}, s{tB}")
    A(f"s_lshl_b32 s{tB}, s{sI}, 7")
    A(f"s_add_u32 s{tA}, s{tA}, s{tB}")
    A(f"buffer_store_dwordx4 v[160:163], v50, {srd(SWS)}, s{tA} offen sc1")
    A(f"{lc}:")
    stamp(8)
    A(f"v_lshrrev_b32 v19, 3, v{vN}")
    A("v_lshlrev_b32 v19, 7, v19")
    A(f"v_lshl_add_u32 v19, v{vK}, 3, v19")
    A(f"s_lshl_b32 s{sA2}, s{sI}, 5")
    A(f"s_add_u32 s{sA2}, s{sA2}, s{sIB}")
    A(f"s_add_u32 s{sA2}, s{sA2}, {CTX_REL}")
    def cx_loads():
        for s in range(8):
            A(f"buffer_load_dwordx2 {vr(176+2*s,2)}, v19, {srd(SWS)}, s{sA2} offen offset:{s*256} sc1")
    cx_loads()
    A("s_waitcnt vmcnt(0)")
    poll("cx", poison_check(range(176, 192), 50), cx_loads)
    stamp(9)
    for st in (1, 2, 4):
        for s in range(0, 8, 2*st):
            A(f"v_pk_add_f32 {vr(176+2*s,2)}, {vr(176+2*s,2)}, {vr(176+2*(s+st),2)}")
    A("v_cvt_pk_bf16_f32 v52, v176, v177")
    build_A(AOPS, 52, 0); build_A(AOPS+4, 52, 1)
    A("s_nop 1")
    OC = 224
    for q in range(2):
        for cb in range(4):
            c = "0" if q == 0 else vr(OC+4*cb, 4)
            A(f"v_mfma_f32_16x16x32_bf16 {vr(OC+4*cb,4)}, {vr(AOPS+4*q,4)}, {vr(WO+(4*q+cb)*4,4)}, {c}")
    A(f"s_lshl_b32 s{tA}, s{sI}, 12")
    dtile_addr(50, 51, 11, tA)
    A("s_nop 6")
    for cb in range(4):
        A(f"ds_write_b128 v50, {vr(OC+4*cb,4)} offset:{OPP_L+cb*512}")
    gsync(C_OPP)
    ldone = e.label("L_sum5d")
    A("v_subrev_u32 v53, 256, v0")
    A("v_cmp_gt_u32 vcc, 224, v53")
    A(f"s_and_saveexec_b64 s[{sEX}:{sEX+1}], vcc")
    A(f"s_cbranch_execz {ldone}")
    A("v_cmp_le_u32 vcc, 112, v53")
    A("s_nop 1")
    A("v_cndmask_b32 v50, 0, 1, vcc")
    A("v_mul_u32_u24 v51, 112, v50")
    A("v_sub_u32 v51, v53, v51")
    A("v_lshlrev_b32 v52, 11, v50")
    A("v_lshl_add_u32 v52, v51, 4, v52")
    for w2 in range(4):
        A(f"ds_read_b128 {vr(160+4*w2,4)}, v52 offset:{OPP_L+w2*4096}")
    A("s_waitcnt lgkmcnt(0)")
    tree_sum4(160, 4)
    A("v_lshrrev_b32 v52, 2, v53")
    A("v_lshlrev_b32 v52, 13, v52")
    A("v_and_b32 v51, 3, v53")
    A("v_lshl_add_u32 v52, v51, 4, v52")
    A(f"s_mul_i32 s{tA}, s{sP}, {56*8192}")
    A(f"s_lshl_b32 s{tB}, s{sU}, 6")
    A(f"s_add_u32 s{tA}, s{tA}, s{tB}")
    A(f"s_add_u32 s{tA}, s{tA}, {OUTB_OFF}")
    A(f"buffer_store_dwordx4 v[160:163], v52, {srd(SWS)}, s{tA} offen sc1")
    A(f"{ldone}:")
    A(f"s_mov_b64 exec, s[{sEX}:{sEX+1}]")
    lx = e.label("L_x")
    A(f"s_cmp_lg_u32 s{sI}, 0")
    A(f"s_cbranch_scc1 {lx}")
    signal(C_OPP)
    A(f"{lx}:")
    stamp(10)
    A("L_fin:")
    stamp(11)
    if stamps:
        A(f"s_lshl_b32 s{tA}, s2, 3")
        A(f"s_add_u32 s{tA}, s{tA}, s{sW}")
        A(f"s_lshl_b32 s{tA}, s{tA}, 6")
        A(f"s_add_u32 s{tA}, s{tA}, {STAMP_OFF}")
        A("s_waitcnt lgkmcnt(0)")
        for i in range(3): A(f"ds_read_b128 {vr(32+4*i,4)}, v{vSTA} offset:{16*i}")
        A("s_waitcnt lgkmcnt(0)")
        A(f"v_mov_b32 v32, s{sST0}")
        A("v_mov_b32 v44, 0")
        A("s_mov_b64 exec, 1")
        for i in range(3):
            A(f"buffer_store_dwordx4 {vr(32+4*i,4)}, v44, {srd(SWS)}, s{tA} offen offset:{16*i}")
        A("s_mov_b64 exec, -1")
        if dbgid >= 0:
            A(f"s_cmp_lg_u32 s2, {dbgid}")
            A("s_cbranch_scc1 L_end")
            A(f"s_cmp_lg_u32 s{sI}, 0")
            A("s_cbranch_scc1 L_end")
            A("s_load_dwordx2 s[40:41], s[0:1], 104")
            A("s_mov_b32 s42, 256")
            A("s_mov_b32 s43, 0x00020000")
            A("s_waitcnt lgkmcnt(0)")
            lg = e.label("L_dg1")
            A(f"s_cmp_ge_u32 s{sW}, 4")
            A(f"s_cbranch_scc1 {lg}")
            for k, idx in enumerate((2, 3, 5, 4, 9, 10, 11, 7)):
                A(f"v_sub_u32 v{48+k}, v{32+idx}, v32")
            A("s_mov_b64 exec, 1")
            A("buffer_store_dwordx4 v[48:51], v44, s[40:43], 0 offen")
            A("buffer_store_dwordx4 v[52:55], v44, s[40:43], 0 offen offset:16")
            A("s_branch L_end")
            A(f"{lg}:")
            for k, idx in enumerate((2, 1, 4, 6, 7, 8, 9, 10)):
                A(f"v_sub_u32 v{48+k}, v{32+idx}, v32")
            A("s_mov_b64 exec, 1")
            A("buffer_store_dwordx4 v[48:51], v44, s[40:43], 0 offen offset:32")
            A("buffer_store_dwordx4 v[52:55], v44, s[40:43], 0 offen offset:48")
    A("L_end:")
    return e.text()

if __name__ == "__main__":
    import argparse
    ap = argparse.ArgumentParser()
    ap.add_argument("-o", default="k7.s")
    ap.add_argument("--stamps", action="store_true")
    ap.add_argument("--nt", action="store_true")
    ap.add_argument("--f2_sleep", type=int, default=2)
    ap.add_argument("--st_sleep", type=int, default=2)
    ap.add_argument("--dbgid", type=int, default=-1)
    a = ap.parse_args()
    body = gen(stamps=a.stamps, nt=a.nt, f2_sleep=a.f2_sleep, st_sleep=a.st_sleep, dbgid=a.dbgid)
    open(a.o, "w").write(single(body, 256, 512, 163840, 256, 102, 256))
```

```python
import sys
from asmlib import *

class E:
    def __init__(s):
        s.l = []; s.lab = 0
    def __call__(s, t): s.l.append(t)
    def label(s, p="L"):
        s.lab += 1
        return f"{p}_{s.lab}"
    def text(s): return "\n".join(s.l)

QA_OFF = 0
QVB_OFF = 256 << 10
FL2_OFF = 384 << 10
FL3_OFF = 400 << 10
EPOCH_OFF = 512 << 10
ST_OFF = 576 << 10
INBOX_OFF = 1 << 20
IB_STRIDE = 40960
CTX_REL = 32768
F2_REL = 34816
STP_REL = 36864
OUTB_OFF = 20 << 20
STAMP_OFF = 32 << 20

R1 = 131072
SP_L = R1
QV_L = R1 + 16384
G1S = R1 + 17408
AL_L = G1S
OP_L = G1S + 1024
QP_L = G1S + 1024
CP_L = G1S + 5120
CNT_L = R1 + 30720
STL = CNT_L + 256
OPP_L = 0
C_QP, C_QV, C_SP, C_POIS, C_OP, C_CP, C_OPP, C_G0DONE, C_QAACK, C_F3 = range(10)

sW, sP, sH, sJ, sB, sKB, sU, sTAG = 3, 4, 5, 6, 7, 8, 9, 11
SWS = 12
tA, tB, sG, sIB, sOB, sH5, sEX, sTO, sA1, sA2, sI, sM, sST, sST0, sX1, sTP = 16, 17, 18, 19, 20, 21, 22, 24, 25, 26, 27, 28, 30, 32, 33, 34
SX, SCKV, SWQ, SWUK, SWUV, SWO, SOUT = 36, 40, 44, 48, 52, 56, 60
PB = 36
def srd(r): return f"s[{r}:{r+3}]"
vL, vN, vK = 1, 2, 3
vSEL = 4
vL16, vN16, vSTA = 12, 14, 15
def vr(a, n): return f"v[{a}:{a+n-1}]"

def gen(stamps=False, timeout=100000, nt=False, f2_sleep=2, st_sleep=2, dbgid=-1, wpre=24):
    e = E(); A = e
    NT = " nt" if nt else ""
    def stamp(idx):
        if not stamps: return
        A(f"s_memrealtime s[{sST}:{sST+1}]")
        A("s_waitcnt lgkmcnt(0)")
        if idx == 0:
            A(f"s_mov_b32 s{sST0}, s{sST}")
        else:
            A(f"v_mov_b32 v29, s{sST}")
            A("s_mov_b64 exec, 1")
            A(f"ds_write_b32 v{vSTA}, v29 offset:{4*idx}")
            A("s_mov_b64 exec, -1")
    def build_A(dst, xreg, tp):
        for p in range(4):
            A(f"v_perm_b32 v{dst+p}, v{xreg}, v{xreg}, v{vSEL+4*tp+p}")
    def tree_sum4(base, n):
        step = 1
        while step < n:
            for q in range(0, n, 2*step):
                if q + step >= n: continue
                a, b2 = base + 4*q, base + 4*(q+step)
                A(f"v_pk_add_f32 {vr(a,2)}, {vr(a,2)}, {vr(b2,2)}")
                A(f"v_pk_add_f32 {vr(a+2,2)}, {vr(a+2,2)}, {vr(b2+2,2)}")
            step *= 2
    def poll(name, check, reissue, sleep=0):
        lp = e.label("L_" + name); lpd = e.label("L_" + name + "d")
        A(f"s_mov_b32 s{sTO}, {timeout}")
        A(f"{lp}:")
        check()
        A(f"s_cbranch_scc1 {lpd}")
        A(f"s_sub_u32 s{sTO}, s{sTO}, 1")
        A(f"s_cmp_eq_u32 s{sTO}, 0")
        A(f"s_cbranch_scc1 {lpd}")
        if sleep: A(f"s_sleep {sleep}")
        reissue()
        A("s_waitcnt vmcnt(0)")
        A(f"s_branch {lp}")
        A(f"{lpd}:")
    def spoll(name, soff, nblk, base, tagregs, sleep=0):
        lp = e.label("L_" + name); lpd = e.label("L_" + name + "d")
        A(f"s_mov_b32 s{sTO}, {timeout}")
        A(f"{lp}:")
        for k in range(nblk):
            A(f"s_load_dwordx16 s[{base+16*k}:{base+16*k+15}], s[{SWS}:{SWS+1}], s{soff} offset:{64*k} glc")
        A("s_waitcnt lgkmcnt(0)")
        if tagregs == "all":
            n = 16 * nblk
            A(f"s_xor_b64 s[{sM}:{sM+1}], s[{base}:{base+1}], s[{sTP}:{sTP+1}]")
            for k in range(2, n, 2):
                A(f"s_xor_b64 s[{sEX}:{sEX+1}], s[{base+k}:{base+k+1}], s[{sTP}:{sTP+1}]")
                A(f"s_or_b64 s[{sM}:{sM+1}], s[{sM}:{sM+1}], s[{sEX}:{sEX+1}]")
            A(f"s_cmp_eq_u64 s[{sM}:{sM+1}], 0")
        else:
            A(f"s_xor_b32 s{sM}, s{tagregs[0]}, s{sTAG}")
            for r in tagregs[1:]:
                A(f"s_xor_b32 s{sM+1}, s{r}, s{sTAG}")
                A(f"s_or_b32 s{sM}, s{sM}, s{sM+1}")
            A(f"s_cmp_eq_u32 s{sM}, 0")
        A(f"s_cbranch_scc1 {lpd}")
        A(f"s_sub_u32 s{sTO}, s{sTO}, 1")
        A(f"s_cmp_eq_u32 s{sTO}, 0")
        A(f"s_cbranch_scc1 {lpd}")
        if sleep: A(f"s_sleep {sleep}")
        A(f"s_branch {lp}")
        A(f"{lpd}:")
    def poison_check(regs, tmp):
        def f():
            r = list(regs)
            A(f"v_max3_u32 v{tmp}, v{r[0]}, v{r[1]}, v{r[2]}"); r = r[3:]
            while len(r) >= 2:
                A(f"v_max3_u32 v{tmp}, v{tmp}, v{r[0]}, v{r[1]}"); r = r[2:]
            if r:
                A(f"v_max_u32 v{tmp}, v{tmp}, v{r[0]}")
            A(f"v_cmp_eq_u32 vcc, -1, v{tmp}")
            A("s_nop 1")
            A("s_cmp_eq_u64 vcc, 0")
        return f
    def signal(c, areg=30):
        A("s_mov_b64 exec, 1")
        A(f"ds_add_u32 v{areg}, v31 offset:{4*c}")
        A("s_mov_b64 exec, -1")
    def arrive(c):
        A("s_waitcnt lgkmcnt(0)")
        signal(c)
    def wait_cnt(c, n, areg=30, sleep=0):
        lp = e.label("L_w"); lpd = e.label("L_wd")
        A(f"s_mov_b32 s{sTO}, {timeout*20}")
        A(f"{lp}:")
        A(f"ds_read_b32 v29, v{areg} offset:{4*c}")
        A("s_waitcnt lgkmcnt(0)")
        A(f"v_readfirstlane_b32 s{tB}, v29")
        A(f"s_sub_u32 s{sTO}, s{sTO}, 1")
        A(f"s_cmp_eq_u32 s{sTO}, 0")
        A(f"s_cbranch_scc1 {lpd}")
        A(f"s_cmp_ge_u32 s{tB}, {n}")
        A(f"s_cbranch_scc1 {lpd}")
        if sleep: A(f"s_sleep {sleep}")
        A(f"s_branch {lp}")
        A(f"{lpd}:")
    def gsync(c):
        arrive(c); wait_cnt(c, 4)
    def selectors():
        A(f"v_and_b32 v17, 1, v{vN}")
        A(f"v_bfe_u32 v18, v{vN}, 1, 2")
        A("v_cmp_eq_u32 vcc, 1, v17")
        for tp in range(2):
            lo = 0x0C0C0000 | ((2*tp+1) << 8) | (2*tp)
            hi = ((2*tp+1) << 24) | ((2*tp) << 16) | 0x0C0C
            A(f"v_mov_b32 v24, 0x{lo:08x}")
            A(f"v_mov_b32 v25, 0x{hi:08x}")
            A(f"v_cndmask_b32 v{26+tp}, v24, v25, vcc")
        A(f"v_mov_b32 v24, 0x0c0c0c0c")
        for p in range(4):
            A(f"v_cmp_eq_u32 vcc, {p}, v18")
            A("s_nop 1")
            for tp in range(2):
                A(f"v_cndmask_b32 v{vSEL+4*tp+p}, v24, v{26+tp}, vcc")
    def mk_tag():
        A("s_waitcnt lgkmcnt(0)")
        A(f"s_mul_i32 s{sTAG}, s{sTAG}, 0x9E3779B1")
        A(f"s_add_u32 s{sTAG}, s{sTAG}, 0x7F4A7C15")
        A(f"s_mov_b32 s{sTP}, s{sTAG}")
        A(f"s_mov_b32 s{sTP+1}, s{sTAG}")
    def dtile_addr(dst, tmp, bshift, sbase):
        A(f"v_lshrrev_b32 v{dst}, 1, v{vK}")
        A(f"v_lshlrev_b32 v{dst}, {bshift}, v{dst}")
        A(f"v_lshl_add_u32 v{dst}, v{vN}, 5, v{dst}")
        A(f"v_and_b32 v{tmp}, 1, v{vK}")
        A(f"v_lshl_add_u32 v{dst}, v{tmp}, 4, v{dst}")
        A(f"v_add_u32 v{dst}, s{sbase}, v{dst}")

    A("s_cmp_ge_u32 s2, 256")
    A("s_cbranch_scc1 L_end")
    stamp(0)
    A(f"s_and_b32 s{tA}, s2, 7")
    A(f"s_lshr_b32 s{tB}, s2, 6")
    A(f"s_lshl_b32 s{sG}, s{tA}, 2")
    A(f"s_add_u32 s{sG}, s{sG}, s{tB}")
    A(f"s_lshr_b32 s{sP}, s{sG}, 4")
    A(f"s_mul_i32 s10, s{sP}, 48")
    A(f"s_load_dwordx2 s[{SWS}:{SWS+1}], s[0:1], 112")
    for r, off in ((SX, 0), (SWQ, 16), (SWUK, 24), (SCKV, 8), (SWUV, 32), (SWO, 40)):
        A(f"s_load_dwordx2 s[{r}:{r+1}], s[0:1], s10 offset:{off}")
    A(f"s_and_b32 s{sH}, s{sG}, 15")
    A(f"s_lshr_b32 s{tA}, s2, 3")
    A(f"s_and_b32 s{sJ}, s{tA}, 7")
    A(f"s_lshl_b32 s{sU}, s{sH}, 3")
    A(f"s_add_u32 s{sU}, s{sU}, s{sJ}")
    A(f"s_lshr_b32 s{sB}, s{sU}, 6")
    A(f"s_and_b32 s{sKB}, s{sU}, 63")
    A(f"v_and_b32 v{vL}, 63, v0")
    A(f"v_and_b32 v{vN}, 15, v0")
    A(f"v_bfe_u32 v{vK}, v0, 4, 2")
    A(f"v_lshrrev_b32 v13, 6, v0")
    A("s_nop 0")
    A(f"v_readfirstlane_b32 s{sW}, v13")
    for r, sz in ((SX, 1792), (SCKV, 16777216), (SWQ, 3670016), (SWUK, 8388608), (SWUV, 8388608), (SWO, 3670016), (SWS, 268435456)):
        A(f"s_mov_b32 s{r+2}, {sz}")
        A(f"s_mov_b32 s{r+3}, 0x00020000")
    A(f"s_and_b32 s{sI}, s{sW}, 3")
    A(f"v_lshlrev_b32 v{vL16}, 4, v{vL}")
    A(f"v_lshlrev_b32 v{vN16}, 4, v{vN}")
    A(f"v_mov_b32 v30, {CNT_L}")
    A("v_mov_b32 v31, 1")
    A(f"v_lshlrev_b32 v{vSTA}, 6, v13")
    A(f"v_add_u32 v{vSTA}, {STL}, v{vSTA}")
    A(f"v_lshlrev_b32 v13, 2, v{vL}")
    A(f"v_add_u32 v13, {CNT_L}, v13")
    A("v_mov_b32 v29, 0")
    A("ds_write_b32 v13, v29")
    A(f"s_lshl_b32 s{sH5}, s{sH}, 9")
    A(f"s_lshl_b32 s{sIB}, s{sP}, 7")
    A(f"s_add_u32 s{sIB}, s{sIB}, s{sU}")
    A(f"s_mul_i32 s{sIB}, s{sIB}, {IB_STRIDE}")
    A(f"s_add_u32 s{sIB}, s{sIB}, {INBOX_OFF}")
    A(f"s_mul_i32 s{sOB}, s{sP}, 56")
    A(f"s_add_u32 s{sOB}, s{sOB}, s{sU}")
    A(f"s_lshl_b32 s{sOB}, s{sOB}, 13")
    A(f"s_add_u32 s{sOB}, s{sOB}, {OUTB_OFF}")
    A(f"s_lshl_b32 s{tA}, s{sI}, 2")
    A(f"v_add_u32 v28, s{tA}, v30")
    A("s_waitcnt lgkmcnt(0)")
    A(f"s_lshl_b32 s{tA}, s{sP}, 8")
    A(f"s_add_u32 s{tA}, s{tA}, {EPOCH_OFF}")
    A(f"s_load_dword s{sTAG}, s[{SWS}:{SWS+1}], s{tA}")
    A(f"s_cmp_ge_u32 s{sW}, 4")
    A("s_cbranch_scc1 L_G1")

    A("s_setprio 2")
    WUK = 80; ACC = 176
    A(f"v_lshlrev_b32 v16, 13, v{vN}")
    A(f"v_lshl_add_u32 v16, v{vK}, 4, v16")
    A(f"s_lshl_b32 s{tA}, s{sJ}, 2")
    A(f"s_add_u32 s{tA}, s{tA}, s{sI}")
    A(f"s_lshl_b32 s{tA}, s{tA}, 18")
    A(f"s_add_u32 s{tA}, s{tA}, s{sH5}")
    A("s_barrier")
    for tl in range(2):
        if tl: A(f"s_add_u32 s{tA}, s{tA}, {16*8192}")
        for ks in range(8):
            A(f"buffer_load_dwordx4 {vr(WUK+(tl*8+ks)*4,4)}, v16, {srd(SWUK)}, s{tA} offen offset:{ks*64}{NT}")
    A("s_setprio 3")
    mk_tag()
    A(f"s_lshl_b32 s{sA1}, s{sG}, 11")
    A(f"s_lshl_b32 s{tA}, s{sI}, 9")
    A(f"s_add_u32 s{sA1}, s{sA1}, s{tA}")
    A(f"s_add_u32 s{sA1}, s{sA1}, {QVB_OFF}")
    for p in range(2):
        if p: A(f"s_add_u32 s{sA1}, s{sA1}, 256")
        spoll(f"qv{p}", sA1, 4, PB, [PB + 2*k + 1 for k in range(32)], sleep=1)
        for k in range(32):
            A(f"v_writelane_b32 v32, s{PB+2*k}, {32*p+k}")
    A("v_lshlrev_b32 v17, 1, v0")
    A(f"v_add_u32 v17, {QV_L}, v17")
    A("ds_write_b16 v17, v32")
    A("ds_write_b16_d16_hi v17, v32 offset:512")
    gsync(C_QV)
    A(f"v_and_b32 v17, 1, v{vN}")
    A("v_lshlrev_b32 v17, 9, v17")
    A(f"v_lshl_add_u32 v17, v{vK}, 4, v17")
    A(f"v_add_u32 v17, {QV_L}, v17")
    for ks in range(8):
        A(f"ds_read_b128 {vr(32+4*ks,4)}, v17 offset:{ks*64}")
    A("s_waitcnt lgkmcnt(0)")
    stamp(2)
    A("s_waitcnt vmcnt(0)")
    for ks in range(8):
        for tl in range(2):
            c = "0" if ks == 0 else vr(ACC+4*tl, 4)
            A(f"v_mfma_f32_16x16x32_bf16 {vr(ACC+4*tl,4)}, {vr(WUK+(tl*8+ks)*4,4)}, {vr(32+4*ks,4)}, {c}")
    A(f"v_lshlrev_b32 v17, 15, v{vN}")
    A(f"v_lshl_add_u32 v17, v{vK}, 3, v17")
    A(f"s_lshl_b32 s{tA}, s{sP}, 16")
    A(f"s_lshl_b32 s{tB}, s{sH}, 11")
    A(f"s_add_u32 s{tA}, s{tA}, s{tB}")
    A(f"s_lshl_b32 s{tB}, s{sJ}, 8")
    A(f"s_add_u32 s{tA}, s{tA}, s{tB}")
    A(f"s_lshl_b32 s{tB}, s{sI}, 6")
    A(f"s_add_u32 s{tA}, s{tA}, s{tB}")
    A("v_mov_b32 v32, 0x3db8aa3b")
    A("s_nop 1")
    for r in range(8):
        A(f"v_mul_f32 v{ACC+r}, v32, v{ACC+r}")
    for tl in range(2):
        A(f"v_cvt_pk_bf16_f32 v{ACC+8+2*tl}, v{ACC+4*tl}, v{ACC+4*tl+1}")
        A(f"v_cvt_pk_bf16_f32 v{ACC+9+2*tl}, v{ACC+4*tl+2}, v{ACC+4*tl+3}")
    A(f"v_cmp_gt_u32 vcc, 2, v{vN}")
    A(f"s_and_saveexec_b64 s[{sEX}:{sEX+1}], vcc")
    for tl in range(2):
        A(f"buffer_store_dwordx2 {vr(ACC+8+2*tl,2)}, v17, {srd(SWS)}, s{tA} offen offset:{32*tl} sc1")
    A(f"s_mov_b64 exec, s[{sEX}:{sEX+1}]")
    QAr = 32; CA = 64; SA = 192; AD = 208; TD = 20
    A(f"s_lshl_b32 s{sX1}, s{sI}, 15")
    for ks in range(4):
        A(f"v_add_u32 v{AD+ks}, {4*ks}, v{vK}")
        A(f"v_xor_b32 v{AD+ks}, v{AD+ks}, v{vN}")
        A(f"v_lshlrev_b32 v{AD+ks}, 4, v{AD+ks}")
        A(f"v_lshl_add_u32 v{AD+ks}, v{vN}, 8, v{AD+ks}")
        A(f"v_add_u32 v{AD+ks}, s{sX1}, v{AD+ks}")
    A(f"v_lshrrev_b32 v{AD+4}, 2, v{vN}")
    A(f"v_and_b32 v{AD+5}, 3, v{vN}")
    A(f"v_lshl_add_u32 v{AD+6}, v{vK}, 2, v{AD+4}")
    A(f"v_lshlrev_b32 v{AD+6}, 8, v{AD+6}")
    A(f"v_add_u32 v{AD+6}, s{sX1}, v{AD+6}")
    A(f"v_xor_b32 v{AD+7}, v{AD+5}, v{vK}")
    A(f"v_lshl_add_u32 v{AD+6}, v{AD+7}, 6, v{AD+6}")
    A(f"v_and_b32 v{AD+5}, 1, v{AD+5}")
    for t in range(8):
        tau, hb = t >> 1, t & 1
        A(f"v_xor_b32 v{AD+7}, {tau}, v{AD+4}")
        A(f"v_lshl_add_u32 v{TD+t}, v{AD+7}, 4, v{AD+6}")
        A(f"v_xor_b32 v{AD+7}, {hb}, v{AD+5}")
        A(f"v_lshl_add_u32 v{TD+t}, v{AD+7}, 3, v{TD+t}")
    wait_cnt(C_POIS, 4)
    A("s_waitcnt vmcnt(0)")
    A("s_mov_b64 exec, 1")
    A(f"ds_add_rtn_u32 v29, v30, v31 offset:{4*C_QAACK}")
    A("s_waitcnt lgkmcnt(0)")
    A(f"v_readfirstlane_b32 s{tB}, v29")
    lnf = e.label("L_nof2")
    A(f"s_cmp_lg_u32 s{tB}, 3")
    A(f"s_cbranch_scc1 {lnf}")
    A("s_mov_b64 exec, -1")
    A(f"s_mul_i32 s{tA}, s{sP}, {128*IB_STRIDE}")
    A(f"s_lshl_b32 s{tB}, s{sJ}, 6")
    A(f"s_add_u32 s{tA}, s{tA}, s{tB}")
    A(f"s_lshl_b32 s{tB}, s{sH}, 2")
    A(f"s_add_u32 s{tA}, s{tA}, s{tB}")
    A(f"s_add_u32 s{tA}, s{tA}, {INBOX_OFF + F2_REL}")
    A(f"s_mov_b32 s{tB}, {IB_STRIDE}")
    A(f"v_mul_lo_u32 v17, v{vL}, s{tB}")
    A(f"v_mov_b32 v29, s{sTAG}")
    A(f"buffer_store_dword v29, v17, {srd(SWS)}, s{tA} offen sc1")
    A(f"s_add_u32 s{tA}, s{tA}, {64*IB_STRIDE}")
    A(f"buffer_store_dword v29, v17, {srd(SWS)}, s{tA} offen sc1")
    A(f"{lnf}:")
    A("s_mov_b64 exec, -1")
    stamp(3)
    A(f"s_lshl_b32 s{tA}, s{sI}, 7")
    A(f"s_add_u32 s{sA1}, s{sIB}, s{tA}")
    A(f"s_add_u32 s{sA1}, s{sA1}, {F2_REL}")
    A(f"v_lshlrev_b32 v18, 11, v{vN}")
    A(f"v_lshl_add_u32 v18, v{vK}, 4, v18")
    A(f"s_lshl_b32 s{sA2}, s{sP}, 1")
    A(f"s_add_u32 s{sA2}, s{sA2}, s{sB}")
    A(f"s_lshl_b32 s{sA2}, s{sA2}, 15")
    A(f"s_lshl_b32 s{tA}, s{sI}, 9")
    A(f"s_add_u32 s{sA2}, s{sA2}, s{tA}")
    spoll("f2", sA1, 2, PB, "all", sleep=f2_sleep)
    for k8 in range(8):
        A(f"buffer_load_dwordx4 {vr(QAr+4*k8,4)}, v18, {srd(SWS)}, s{sA2} offen offset:{k8*64} sc1")
    stamp(5)
    wait_cnt(16, 1, areg=28, sleep=1)
    stamp(4)
    for cr in range(2):
        for kt in range(4):
            for ks in range(4):
                A(f"ds_read_b128 {vr(CA+cr*64+(kt*4+ks)*4,4)}, v{AD+ks} offset:{cr*16384+kt*4096}")
    A("s_waitcnt vmcnt(0) lgkmcnt(0)")
    for cr in range(2):
        for ks in range(4):
            for kt in range(4):
                c = "0" if (cr == 0 and ks == 0) else vr(SA+4*kt, 4)
                A(f"v_mfma_f32_16x16x32_bf16 {vr(SA+4*kt,4)}, {vr(CA+cr*64+(kt*4+ks)*4,4)}, {vr(QAr+(cr*4+ks)*4,4)}, {c}")
    A(f"s_lshl_b32 s{tA}, s{sI}, 12")
    A(f"s_add_u32 s{tA}, s{tA}, {SP_L}")
    A(f"v_add_u32 v17, s{tA}, v{vL16}")
    A("s_nop 7")
    for kt in range(4):
        A(f"ds_write_b128 v17, {vr(SA+4*kt,4)} offset:{kt*1024}")
    arrive(C_SP)
    stamp(7)
    CT = 64
    for cr in range(2):
        for t in range(8):
            for ks2 in range(2):
                for u in range(2):
                    A(f"ds_read_b64_tr_b16 {vr(CT+cr*64+(t*2+ks2)*4+2*u,2)}, v{TD+t} offset:{cr*16384+(32*ks2+16*u)*256}")
    wait_cnt(C_SP, 4)
    stamp(8)
    A(f"v_add_u32 v17, {SP_L}, v{vL16}")
    for w2 in range(4):
        for kt in range(4):
            A(f"ds_read_b128 {vr(192+w2*16+kt*4,4)}, v17 offset:{w2*4096+kt*1024}")
    A("s_waitcnt lgkmcnt(0)")
    for r in range(0, 16, 2):
        A(f"v_pk_add_f32 {vr(192+r,2)}, {vr(192+r,2)}, {vr(208+r,2)}")
        A(f"v_pk_add_f32 {vr(224+r,2)}, {vr(224+r,2)}, {vr(240+r,2)}")
    for r in range(0, 16, 2):
        A(f"v_pk_add_f32 {vr(192+r,2)}, {vr(192+r,2)}, {vr(224+r,2)}")
    A(f"v_max3_f32 v48, v{SA}, v{SA+1}, v{SA+2}")
    for i in range(3, 15, 2):
        A(f"v_max3_f32 v48, v48, v{SA+i}, v{SA+i+1}")
    A(f"v_max_f32 v48, v48, v{SA+15}")
    A("v_mov_b32 v49, v48"); A("s_nop 1"); A("v_permlane32_swap_b32 v48, v49"); A("v_max_f32 v48, v48, v49")
    A("v_mov_b32 v49, v48"); A("s_nop 1"); A("v_permlane16_swap_b32 v48, v49"); A("v_max_f32 v48, v48, v49")
    for i in range(16): A(f"v_sub_f32 v{SA+i}, v{SA+i}, v48")
    for i in range(16): A(f"v_exp_f32 v{SA+i}, v{SA+i}")
    A("s_nop 0")
    for ks2 in range(2):
        for q in range(4):
            s = SA + 8*ks2 + 2*q
            A(f"v_cvt_pk_bf16_f32 v{32+4*ks2+q}, v{s}, v{s+1}")
    A(f"v_add_f32 v49, v{SA}, v{SA+1}")
    for i in range(2, 16): A(f"v_add_f32 v49, v49, v{SA+i}")
    OA = 192
    A("s_nop 1")
    for cr in range(2):
        for t in range(8):
            A(f"v_mfma_f32_16x16x32_bf16 {vr(OA+cr*32+4*t,4)}, {vr(CT+cr*64+(t*2)*4,4)}, v[32:35], 0")
        for t in range(8):
            A(f"v_mfma_f32_16x16x32_bf16 {vr(OA+cr*32+4*t,4)}, {vr(CT+cr*64+(t*2+1)*4,4)}, v[36:39], {vr(OA+cr*32+4*t,4)}")
    signal(C_G0DONE)
    stamp(9)
    A("v_mov_b32 v50, v49"); A("s_nop 1"); A("v_permlane32_swap_b32 v49, v50"); A("v_add_f32 v49, v49, v50")
    A("v_mov_b32 v50, v49"); A("s_nop 1"); A("v_permlane16_swap_b32 v49, v50"); A("v_add_f32 v49, v49, v50")
    A(f"s_mov_b32 s{tA}, {IB_STRIDE*8}")
    A(f"v_mul_lo_u32 v17, v{vN}, s{tA}")
    A(f"v_lshl_add_u32 v18, v{vK}, 4, v17")
    A(f"s_lshl_b32 s{tA}, s{sP}, 7")
    A(f"s_lshl_b32 s{tB}, s{sI}, 1")
    A(f"s_add_u32 s{tA}, s{tA}, s{tB}")
    A(f"s_mul_i32 s{tA}, s{tA}, {IB_STRIDE}")
    A(f"s_add_u32 s{tA}, s{tA}, {INBOX_OFF}")
    A(f"s_lshl_b32 s{tB}, s{sU}, 8")
    A(f"s_add_u32 s{sA1}, s{tA}, s{tB}")
    for cr in range(2):
        if cr:
            A(f"s_add_u32 s{sA1}, s{sA1}, {IB_STRIDE}")
        for tau in range(4):
            d = 64 + cr*16 + 4*tau
            a, b2 = OA + cr*32 + 8*tau, OA + cr*32 + 8*tau + 4
            A(f"v_cvt_pk_bf16_f32 v{d}, v{a}, v{a+1}")
            A(f"v_cvt_pk_bf16_f32 v{d+1}, v{a+2}, v{a+3}")
            A(f"v_cvt_pk_bf16_f32 v{d+2}, v{b2}, v{b2+1}")
            A(f"v_cvt_pk_bf16_f32 v{d+3}, v{b2+2}, v{b2+3}")
            A(f"buffer_store_dwordx4 {vr(d,4)}, v18, {srd(SWS)}, s{sA1} offen offset:{tau*64} sc1")
    stamp(6)
    A(f"s_mov_b32 s{tB}, {IB_STRIDE}")
    A(f"v_mul_lo_u32 v16, v{vK}, s{tB}")
    A("v_add_u32 v17, v17, v16")
    A(f"s_lshl_b32 s{tB}, s{sU}, 4")
    A(f"s_add_u32 s{tA}, s{tA}, s{tB}")
    A(f"s_add_u32 s{tA}, s{tA}, {STP_REL}")
    A(f"v_mov_b32 v50, s{sTAG}")
    A("v_mov_b32 v51, 0")
    A("s_waitcnt vmcnt(0)")
    A("s_mov_b32 exec_hi, 0")
    A(f"buffer_store_dwordx4 v[48:51], v17, {srd(SWS)}, s{tA} offen sc1")
    A("s_mov_b64 exec, -1")
    signal(C_F3)
    stamp(10)
    A(f"s_cmp_ge_u32 s{sU}, 56")
    A("s_cbranch_scc1 L_fin")
    A(f"s_cmp_lg_u32 s{sI}, 0")
    A("s_cbranch_scc1 L_fin")
    A(f"s_load_dwordx2 s[{SOUT}:{SOUT+1}], s[0:1], 96")
    A(f"s_mov_b32 s{SOUT+2}, 3584")
    A(f"s_mov_b32 s{SOUT+3}, 0x00020000")
    wait_cnt(C_OPP, 5, sleep=1)
    A(f"s_add_u32 s{tA}, s{sOB}, 4096")
    def ob_loads():
        for i in range(4):
            A(f"buffer_load_dwordx4 {vr(32+4*i,4)}, v{vL16}, {srd(SWS)}, s{sOB} offen offset:{i*1024} sc1")
        for i in range(4):
            A(f"buffer_load_dwordx4 {vr(48+4*i,4)}, v{vL16}, {srd(SWS)}, s{tA} offen offset:{i*1024} sc1")
    ob_loads()
    A("s_waitcnt vmcnt(0)")
    poll("ob", poison_check(range(32, 64), 64), ob_loads)
    tree_sum4(32, 8)
    for rot in (4, 8):
        A("s_nop 1")
        for r in range(32, 36):
            A(f"v_add_f32_dpp v{r}, v{r}, v{r} row_ror:{rot} row_mask:0xf bank_mask:0xf")
    for r in range(32, 36):
        A(f"v_mov_b32 v40, v{r}"); A("s_nop 1"); A(f"v_permlane16_swap_b32 v{r}, v40"); A(f"v_add_f32 v{r}, v{r}, v40")
        A(f"v_mov_b32 v40, v{r}"); A("s_nop 1"); A(f"v_permlane32_swap_b32 v{r}, v40"); A(f"v_add_f32 v{r}, v{r}, v40")
    A("v_cvt_pk_bf16_f32 v36, v32, v33")
    A("v_cvt_pk_bf16_f32 v37, v34, v35")
    A(f"s_cmp_ge_u32 s{sU}, 28")
    A(f"s_cselect_b32 s{tA}, 896, 0")
    A(f"s_mul_i32 s{tB}, s{sP}, 896")
    A(f"s_add_u32 s{tA}, s{tA}, s{tB}")
    A(f"s_lshl_b32 s{tB}, s{sU}, 5")
    A(f"s_add_u32 s{tA}, s{tA}, s{tB}")
    A(f"v_lshlrev_b32 v40, 3, v{vL}")
    A("s_mov_b64 exec, 15")
    A(f"buffer_store_dwordx2 v[36:37], v40, {srd(SOUT)}, s{tA} offen")
    A("s_mov_b64 exec, -1")
    A(f"s_cmp_lg_u32 s{sU}, 0")
    A("s_cbranch_scc1 L_fin")
    A(f"s_lshl_b32 s{tA}, s{sP}, 8")
    A(f"s_add_u32 s{tA}, s{tA}, {EPOCH_OFF}")
    A(f"v_mov_b32 v40, s{sTAG}")
    A("v_mov_b32 v41, 0")
    A("s_mov_b64 exec, 1")
    A(f"buffer_store_dword v40, v41, {srd(SWS)}, s{tA} offen sc1")
    A("s_mov_b64 exec, -1")
    A("s_branch L_fin")

    A("L_G1:")
    A("s_setprio 3")
    vX = 32; WQ = 48; AOP = 192
    A(f"v_lshrrev_b32 v13, 3, v{vN}")
    A("v_mul_u32_u24 v13, 896, v13")
    A(f"v_mad_u32_u24 v13, v{vK}, 56, v13")
    A(f"s_mul_i32 s{tA}, s{sI}, 224")
    for q in range(3):
        A(f"buffer_load_dwordx4 {vr(vX+4*q,4)}, v13, {srd(SX)}, s{tA} offen offset:{16*q}")
    A(f"buffer_load_dwordx2 {vr(vX+12,2)}, v13, {srd(SX)}, s{tA} offen offset:48")
    A(f"v_lshrrev_b32 v19, 2, v{vN}")
    A(f"v_mad_u32_u24 v19, v{vK}, 28, v19")
    A("v_lshlrev_b32 v19, 13, v19")
    A(f"v_and_b32 v16, 3, v{vN}")
    A("v_lshl_add_u32 v19, v16, 4, v19")
    A(f"s_mul_i32 s{tA}, s{sI}, {112*8192}")
    A(f"s_add_u32 s{tA}, s{tA}, s{sH5}")
    A(f"s_lshl_b32 s{tB}, s{sJ}, 6")
    A(f"s_add_u32 s{tA}, s{tA}, s{tB}")
    for t in range(7):
        if t > 0: A(f"s_add_u32 s{tA}, s{tA}, {4*8192}")
        A(f"buffer_load_dwordx4 {vr(WQ+4*t,4)}, v19, {srd(SWQ)}, s{tA} offen{NT}")
    A("s_barrier")
    selectors()
    mk_tag()
    A("s_waitcnt vmcnt(6)")
    seq = [(t, a) for t in range(7) for a in range(4)]
    build_A(AOP, vX, 0)
    for n, (t, a) in enumerate(seq):
        cur = AOP + 4*(n & 1)
        if n + 1 < len(seq):
            t2, a2 = seq[n+1]
            build_A(AOP + 4*((n+1) & 1), vX + ((4*t2+a2) >> 1), a2 & 1)
        else:
            A("s_nop 1")
        if a == 0 and t > 0:
            A(f"s_waitcnt vmcnt({6 - t})")
        c = "0" if t == 0 else vr(ACC+4*a, 4)
        A(f"v_mfma_f32_16x16x32_bf16 {vr(ACC+4*a,4)}, {vr(cur,4)}, {vr(WQ+4*t,4)}, {c}")
    A(f"v_lshrrev_b32 v17, 2, v{vN}")
    A("s_nop 7")
    for a in range(1, 4):
        A(f"v_cmp_eq_u32 vcc, {a}, v17")
        A("s_nop 1")
        for r in range(4):
            A(f"v_cndmask_b32 v{ACC+r}, v{ACC+r}, v{ACC+4*a+r}, vcc")
    for rot in (4, 8):
        A("s_nop 1")
        for r in range(4):
            A(f"v_add_f32_dpp v{ACC+r}, v{ACC+r}, v{ACC+r} row_ror:{rot} row_mask:0xf bank_mask:0xf")
    A(f"s_lshl_b32 s{tA}, s{sI}, 8")
    A(f"s_add_u32 s{tA}, s{tA}, {QP_L}")
    dtile_addr(17, 18, 7, tA)
    A(f"v_cmp_gt_u32 vcc, 4, v{vN}")
    A(f"s_and_saveexec_b64 s[{sEX}:{sEX+1}], vcc")
    A(f"ds_write_b128 v17, {vr(ACC,4)}")
    A(f"s_mov_b64 exec, s[{sEX}:{sEX+1}]")
    arrive(C_QP)
    lq0 = e.label("L_q0")
    A(f"s_cmp_lg_u32 s{sI}, 0")
    A(f"s_cbranch_scc1 {lq0}")
    wait_cnt(C_QP, 4)
    A(f"v_lshlrev_b32 v17, 2, v{vL}")
    A(f"v_add_u32 v17, {QP_L}, v17")
    for w2 in range(4):
        A(f"ds_read_b32 v{32+w2}, v17 offset:{w2*256}")
    A("s_waitcnt lgkmcnt(0)")
    A("v_add_f32 v32, v32, v33"); A("v_add_f32 v34, v34, v35"); A("v_add_f32 v32, v32, v34")
    A("v_mov_b32 v33, v32"); A("s_nop 1")
    A("v_permlane32_swap_b32 v32, v33")
    A("s_nop 0")
    A("v_cvt_pk_bf16_f32 v34, v32, v33")
    A(f"v_mov_b32 v35, s{sTAG}")
    A(f"v_lshlrev_b32 v17, 3, v{vL}")
    A(f"s_lshl_b32 s{tA}, s{sG}, 11")
    A(f"s_lshl_b32 s{tB}, s{sJ}, 8")
    A(f"s_add_u32 s{tA}, s{tA}, s{tB}")
    A(f"s_add_u32 s{tA}, s{tA}, {QVB_OFF}")
    A("s_mov_b32 exec_hi, 0")
    A(f"buffer_store_dwordx2 v[34:35], v17, {srd(SWS)}, s{tA} offen sc1")
    A("s_mov_b64 exec, -1")
    A(f"{lq0}:")
    stamp(2)
    A("s_setprio 0")
    for i in range(4): A(f"v_mov_b32 v{40+i}, -1")
    lp1 = e.label("L_p1")
    A(f"s_cmp_ge_u32 s{sI}, 2")
    A(f"s_cbranch_scc1 {lp1}")
    A(f"s_lshl_b32 s{tA}, s{sI}, 10")
    A(f"s_add_u32 s{tA}, s{tA}, s{sIB}")
    A(f"s_add_u32 s{tA}, s{tA}, {CTX_REL}")
    A(f"buffer_store_dwordx4 v[40:43], v{vL16}, {srd(SWS)}, s{tA} offen sc1")
    A(f"{lp1}:")
    lp2 = e.label("L_p2")
    A(f"s_cmp_ge_u32 s{sU}, 56")
    A(f"s_cbranch_scc1 {lp2}")
    A(f"s_lshl_b32 s{tA}, s{sI}, 11")
    A(f"s_add_u32 s{tA}, s{tA}, s{sOB}")
    A(f"buffer_store_dwordx4 v[40:43], v{vL16}, {srd(SWS)}, s{tA} offen sc1")
    A(f"buffer_store_dwordx4 v[40:43], v{vL16}, {srd(SWS)}, s{tA} offen offset:1024 sc1")
    A(f"{lp2}:")
    VC = 36
    for tt in range(4):
        A(f"v_add_u32 v{VC+tt}, {4*tt}, v{vK}")
        A(f"v_xor_b32 v{VC+tt}, v{VC+tt}, v{vN}")
        A(f"v_lshlrev_b32 v{VC+tt}, 4, v{VC+tt}")
        A(f"v_lshl_add_u32 v{VC+tt}, v{vK}, 11, v{VC+tt}")
    WUV = 64; WO = 128
    A(f"v_lshrrev_b32 v17, 1, v{vK}")
    A(f"v_and_b32 v19, 1, v{vK}")
    A("v_xor_b32 v19, v19, v17")
    A(f"v_lshl_add_u32 v19, v19, 15, v{vN16}")
    A("v_lshl_add_u32 v19, v17, 18, v19")
    A(f"s_lshl_b32 s{sA2}, s{sJ}, 7")
    A(f"s_lshl_b32 s{tA}, s{sI}, 3")
    A(f"s_add_u32 s{sA2}, s{sA2}, s{tA}")
    A(f"s_lshl_b32 s{sA2}, s{sA2}, 13")
    A(f"s_add_u32 s{sA2}, s{sA2}, s{sH5}")
    A("v_mov_b32 v17, 1792")
    A(f"v_mad_u32_u24 v17, v{vK}, v17, v{vN16}")
    A(f"s_lshl_b32 s10, s{sU}, 2")
    A(f"s_add_u32 s10, s10, s{sI}")
    A(f"s_mul_i32 s10, s10, {8*896}")
    A(f"v_cmp_gt_u32 s[{sM}:{sM+1}], 8, v{vN}")
    A(f"s_lshl_b32 s{sA1}, s{sB}, 23")
    A(f"s_lshl_b32 s{tA}, s{sKB}, 17")
    A(f"s_add_u32 s{sA1}, s{sA1}, s{tA}")
    A(f"s_lshl_b32 s{tA}, s{sI}, 9")
    A(f"s_add_u32 s{sA1}, s{sA1}, s{tA}")
    A(f"s_lshl_b32 s{sX1}, s{sI}, 15")
    ops = []
    def wuv_op(n):
        q, dh = n >> 1, n & 1
        A(f"s_add_u32 s{tA}, s{sA2}, {(64*(q>>2) + (q&3))*8192}")
        A(f"buffer_load_dwordx4 {vr(WUV+n*4,4)}, v19, {srd(SWUV)}, s{tA} offen offset:{dh*256}{NT}")
    def wo_op(n):
        q, cb = n >> 2, n & 3
        A(f"s_add_u32 s{tA}, s10, {q*896}")
        if cb == 3: A(f"s_mov_b64 exec, s[{sM}:{sM+1}]")
        A(f"buffer_load_dwordx4 {vr(WO+n*4,4)}, v17, {srd(SWO)}, s{tA} offen offset:{cb*256}{NT}")
        if cb == 3: A("s_mov_b64 exec, -1")
    def ck_op(n):
        t, cr = n >> 1, n & 1
        A(f"s_add_u32 s{tA}, s{sX1}, {cr*16384 + t*1024}")
        A(f"s_mov_b32 m0, s{tA}")
        A(f"s_add_u32 s{tB}, s{sA1}, {t*4*2048 + cr*256}")
        A(f"buffer_load_dwordx4 v{VC+(t&3)}, {srd(SCKV)}, s{tB} offen{NT} lds")
    wl = [(wuv_op, n) for n in range(16)] + [(wo_op, n) for n in range(8)]
    seqo = wl[:wpre] + [(ck_op, n) for n in range(32)]
    post = wl[wpre:]
    for k, (f, n) in enumerate(seqo):
        f(n)
        if k == 3:
            A("s_waitcnt vmcnt(4)")
            signal(C_POIS)
    stamp(1)
    npost = min(len(post), 8)
    for f, n in post[:npost]: f(n)
    A(f"s_waitcnt vmcnt({npost})")
    signal(16, areg=28)
    stamp(4)
    for f, n in post[npost:]: f(n)
    A("s_setprio 2")
    IB = 160
    A(f"v_lshl_add_u32 v18, v{vK}, 11, v{vN16}")
    A(f"s_lshl_b32 s{sA2}, s{sI}, 13")
    A(f"s_add_u32 s{sA2}, s{sA2}, s{sIB}")
    A(f"s_lshr_b32 s{sX1}, s{sI}, 1")
    A(f"s_lshl_b32 s{sX1}, s{sX1}, 10")
    A(f"s_add_u32 s{sX1}, s{sX1}, s{sIB}")
    A(f"s_add_u32 s{sX1}, s{sX1}, {STP_REL}")
    def st_loads():
        A(f"buffer_load_dwordx3 v[48:50], v{vL16}, {srd(SWS)}, s{sX1} offen sc1")
    def st_check():
        A(f"v_cmp_ne_u32 vcc, s{sTAG}, v50")
        A("s_nop 1")
        A("s_cmp_eq_u64 vcc, 0")
    if stamps:
        A("s_waitcnt vmcnt(0)")
        stamp(3)
    wait_cnt(C_F3, 4, sleep=2)
    stamp(5)
    st_loads()
    A("s_waitcnt vmcnt(0)")
    poll("st", st_check, st_loads, sleep=st_sleep)
    stamp(6)
    for q in range(8):
        A(f"buffer_load_dwordx4 {vr(IB+4*q,4)}, v18, {srd(SWS)}, s{sA2} offen offset:{q*256} sc1")
    def wave_reduce(op, r, t):
        for dpp in ("quad_perm:[1,0,3,2]", "quad_perm:[2,3,0,1]", "row_half_mirror", "row_mirror"):
            A("s_nop 1")
            A(f"{op}_dpp v{r}, v{r}, v{r} {dpp} row_mask:0xf bank_mask:0xf")
        A(f"v_mov_b32 v{t}, v{r}"); A("s_nop 1"); A(f"v_permlane16_swap_b32 v{r}, v{t}"); A(f"{op} v{r}, v{r}, v{t}")
        A(f"v_mov_b32 v{t}, v{r}"); A("s_nop 1"); A(f"v_permlane32_swap_b32 v{r}, v{t}"); A(f"{op} v{r}, v{r}, v{t}")
    A("v_mov_b32 v50, v48")
    wave_reduce("v_max_f32", 50, 51)
    A("v_sub_f32 v48, v48, v50")
    A("v_exp_f32 v48, v48")
    A("s_nop 0")
    A("v_mul_f32 v49, v49, v48")
    wave_reduce("v_add_f32", 49, 51)
    A("v_rcp_f32 v49, v49")
    A("s_nop 0")
    A("v_mul_f32 v48, v48, v49")
    A(f"s_lshl_b32 s{tB}, s{sI}, 8")
    A(f"s_add_u32 s{tB}, s{tB}, {AL_L}")
    A(f"v_lshlrev_b32 v50, 2, v{vL}")
    A(f"v_add_u32 v50, s{tB}, v50")
    A("ds_write_b32 v50, v48")
    A(f"s_and_b32 s{tA}, s{sI}, 1")
    A(f"s_lshl_b32 s{tA}, s{tA}, 7")
    A(f"s_add_u32 s{tB}, s{tB}, s{tA}")
    A(f"v_lshlrev_b32 v50, 5, v{vK}")
    A(f"v_add_u32 v50, s{tB}, v50")
    A("s_waitcnt lgkmcnt(0)")
    A("ds_read_b128 v[40:43], v50")
    A("ds_read_b128 v[44:47], v50 offset:16")
    A("s_waitcnt lgkmcnt(0)")
    for q in range(4):
        A(f"v_cvt_pk_bf16_f32 v{52+q}, v{40+2*q}, v{41+2*q}")
    for q in range(4):
        A(f"v_lshlrev_b32 v60, 16, v{52+q}"); A(f"v_and_b32 v61, 0xffff0000, v{52+q}")
        A(f"v_sub_f32 v{40+2*q}, v{40+2*q}, v60"); A(f"v_sub_f32 v{41+2*q}, v{41+2*q}, v61")
        A(f"v_cvt_pk_bf16_f32 v{56+q}, v{40+2*q}, v{41+2*q}")
    A(f"v_cmp_lt_u32 vcc, 7, v{vN}")
    A("s_nop 1")
    for q in range(4):
        A(f"v_cndmask_b32 v{52+q}, v{52+q}, v{56+q}, vcc")
    AOPS = 192
    for q in range(8): build_A(AOPS + 4*q, 52 + (q >> 1), q & 1)
    A("s_waitcnt vmcnt(0)")
    stamp(7)
    for q in range(8):
        c = "0" if q == 0 else "v[40:43]"
        A(f"v_mfma_f32_16x16x32_bf16 v[40:43], {vr(AOPS+4*q,4)}, {vr(IB+4*q,4)}, {c}")
    A(f"s_lshl_b32 s{tA}, s{sI}, 10")
    A(f"s_add_u32 s{tA}, s{tA}, {OP_L}")
    dtile_addr(50, 51, 9, tA)
    A("s_nop 4")
    A("ds_write_b128 v50, v[40:43]")
    gsync(C_OP)
    A(f"v_lshrrev_b32 v19, 3, v{vN}")
    A("v_lshlrev_b32 v19, 11, v19")
    A(f"v_lshl_add_u32 v19, v{vK}, 4, v19")
    A(f"s_lshl_b32 s{tB}, s{sI}, 7")
    A(f"s_add_u32 s{tB}, s{tB}, {OP_L}")
    A(f"v_add_u32 v19, s{tB}, v19")
    for hh in range(2):
        for q in range(4):
            A(f"ds_read_b128 {vr(160+hh*16+4*q,4)}, v19 offset:{q*512+hh*64}")
    A("s_waitcnt lgkmcnt(0)")
    tree_sum4(160, 4); tree_sum4(176, 4)
    A("v_cvt_pk_bf16_f32 v52, v160, v161"); A("v_cvt_pk_bf16_f32 v53, v162, v163")
    A("v_cvt_pk_bf16_f32 v54, v176, v177"); A("v_cvt_pk_bf16_f32 v55, v178, v179")
    for q in range(8): build_A(AOPS + 4*q, 52 + (q >> 1), q & 1)
    A("s_nop 1")
    for q in range(8):
        for dh in range(2):
            c = "0" if q == 0 else vr(40+4*dh, 4)
            A(f"v_mfma_f32_16x16x32_bf16 {vr(40+4*dh,4)}, {vr(AOPS+4*q,4)}, {vr(WUV+(2*q+dh)*4,4)}, {c}")
    A(f"s_lshl_b32 s{tA}, s{sI}, 11")
    A(f"s_add_u32 s{tA}, s{tA}, {CP_L}")
    dtile_addr(50, 51, 10, tA)
    A("s_nop 6")
    A("ds_write_b128 v50, v[40:43]")
    A("ds_write_b128 v50, v[44:47] offset:512")
    arrive(C_CP)
    lc = e.label("L_noctx")
    A(f"s_cmp_ge_u32 s{sI}, 2")
    A(f"s_cbranch_scc1 {lc}")
    wait_cnt(C_CP, 4)
    A(f"s_lshl_b32 s{tB}, s{sI}, 10")
    A(f"s_add_u32 s{tB}, s{tB}, {CP_L}")
    A(f"v_add_u32 v19, s{tB}, v{vL16}")
    for w2 in range(4):
        A(f"ds_read_b128 {vr(160+4*w2,4)}, v19 offset:{w2*2048}")
    A("s_waitcnt lgkmcnt(0)")
    tree_sum4(160, 4)
    A(f"v_lshrrev_b32 v50, 3, v{vL}")
    A(f"s_mov_b32 s{tA}, {IB_STRIDE}")
    A(f"v_mul_lo_u32 v50, v50, s{tA}")
    A(f"v_and_b32 v51, 7, v{vL}")
    A("v_lshl_add_u32 v50, v51, 4, v50")
    A(f"s_mul_i32 s{tA}, s{sG}, {8*IB_STRIDE}")
    A(f"s_add_u32 s{tA}, s{tA}, {INBOX_OFF + CTX_REL}")
    A(f"s_lshl_b32 s{tB}, s{sJ}, 8")
    A(f"s_add_u32 s{tA}, s{tA}, s{tB}")
    A(f"s_lshl_b32 s{tB}, s{sI}, 7")
    A(f"s_add_u32 s{tA}, s{tA}, s{tB}")
    A(f"buffer_store_dwordx4 v[160:163], v50, {srd(SWS)}, s{tA} offen sc1")
    A(f"{lc}:")
    stamp(8)
    A(f"v_lshrrev_b32 v19, 3, v{vN}")
    A("v_lshlrev_b32 v19, 7, v19")
    A(f"v_lshl_add_u32 v19, v{vK}, 3, v19")
    A(f"s_lshl_b32 s{sA2}, s{sI}, 5")
    A(f"s_add_u32 s{sA2}, s{sA2}, s{sIB}")
    A(f"s_add_u32 s{sA2}, s{sA2}, {CTX_REL}")
    def cx_loads():
        for s in range(8):
            A(f"buffer_load_dwordx2 {vr(176+2*s,2)}, v19, {srd(SWS)}, s{sA2} offen offset:{s*256} sc1")
    cx_loads()
    A("s_waitcnt vmcnt(0)")
    poll("cx", poison_check(range(176, 192), 50), cx_loads)
    stamp(9)
    for st in (1, 2, 4):
        for s in range(0, 8, 2*st):
            A(f"v_pk_add_f32 {vr(176+2*s,2)}, {vr(176+2*s,2)}, {vr(176+2*(s+st),2)}")
    A("v_cvt_pk_bf16_f32 v52, v176, v177")
    build_A(AOPS, 52, 0); build_A(AOPS+4, 52, 1)
    A("s_nop 1")
    OC = 224
    for q in range(2):
        for cb in range(4):
            c = "0" if q == 0 else vr(OC+4*cb, 4)
            A(f"v_mfma_f32_16x16x32_bf16 {vr(OC+4*cb,4)}, {vr(AOPS+4*q,4)}, {vr(WO+(4*q+cb)*4,4)}, {c}")
    A(f"s_lshl_b32 s{tA}, s{sI}, 12")
    dtile_addr(50, 51, 11, tA)
    A("s_nop 6")
    for cb in range(4):
        A(f"ds_write_b128 v50, {vr(OC+4*cb,4)} offset:{OPP_L+cb*512}")
    gsync(C_OPP)
    ldone = e.label("L_sum5d")
    A("v_subrev_u32 v53, 256, v0")
    A("v_cmp_gt_u32 vcc, 224, v53")
    A(f"s_and_saveexec_b64 s[{sEX}:{sEX+1}], vcc")
    A(f"s_cbranch_execz {ldone}")
    A("v_cmp_le_u32 vcc, 112, v53")
    A("s_nop 1")
    A("v_cndmask_b32 v50, 0, 1, vcc")
    A("v_mul_u32_u24 v51, 112, v50")
    A("v_sub_u32 v51, v53, v51")
    A("v_lshlrev_b32 v52, 11, v50")
    A("v_lshl_add_u32 v52, v51, 4, v52")
    for w2 in range(4):
        A(f"ds_read_b128 {vr(160+4*w2,4)}, v52 offset:{OPP_L+w2*4096}")
    A("s_waitcnt lgkmcnt(0)")
    tree_sum4(160, 4)
    A("v_lshrrev_b32 v52, 2, v53")
    A("v_lshlrev_b32 v52, 13, v52")
    A("v_and_b32 v51, 3, v53")
    A("v_lshl_add_u32 v52, v51, 4, v52")
    A(f"s_mul_i32 s{tA}, s{sP}, {56*8192}")
    A(f"s_lshl_b32 s{tB}, s{sU}, 6")
    A(f"s_add_u32 s{tA}, s{tA}, s{tB}")
    A(f"s_add_u32 s{tA}, s{tA}, {OUTB_OFF}")
    A(f"buffer_store_dwordx4 v[160:163], v52, {srd(SWS)}, s{tA} offen sc1")
    A(f"{ldone}:")
    A(f"s_mov_b64 exec, s[{sEX}:{sEX+1}]")
    lx = e.label("L_x")
    A(f"s_cmp_lg_u32 s{sI}, 0")
    A(f"s_cbranch_scc1 {lx}")
    signal(C_OPP)
    A(f"{lx}:")
    stamp(10)
    A("L_fin:")
    stamp(11)
    if stamps:
        A(f"s_lshl_b32 s{tA}, s2, 3")
        A(f"s_add_u32 s{tA}, s{tA}, s{sW}")
        A(f"s_lshl_b32 s{tA}, s{tA}, 6")
        A(f"s_add_u32 s{tA}, s{tA}, {STAMP_OFF}")
        A("s_waitcnt lgkmcnt(0)")
        for i in range(3): A(f"ds_read_b128 {vr(32+4*i,4)}, v{vSTA} offset:{16*i}")
        A("s_waitcnt lgkmcnt(0)")
        A(f"v_mov_b32 v32, s{sST0}")
        A("v_mov_b32 v44, 0")
        A("s_mov_b64 exec, 1")
        for i in range(3):
            A(f"buffer_store_dwordx4 {vr(32+4*i,4)}, v44, {srd(SWS)}, s{tA} offen offset:{16*i}")
        A("s_mov_b64 exec, -1")
        if dbgid >= 0:
            A(f"s_cmp_lg_u32 s2, {dbgid}")
            A("s_cbranch_scc1 L_end")
            A(f"s_cmp_lg_u32 s{sI}, 0")
            A("s_cbranch_scc1 L_end")
            A("s_load_dwordx2 s[40:41], s[0:1], 104")
            A("s_mov_b32 s42, 256")
            A("s_mov_b32 s43, 0x00020000")
            A("s_waitcnt lgkmcnt(0)")
            lg = e.label("L_dg1")
            A(f"s_cmp_ge_u32 s{sW}, 4")
            A(f"s_cbranch_scc1 {lg}")
            for k, idx in enumerate((2, 3, 5, 4, 9, 10, 11, 7)):
                A(f"v_sub_u32 v{48+k}, v{32+idx}, v32")
            A("s_mov_b64 exec, 1")
            A("buffer_store_dwordx4 v[48:51], v44, s[40:43], 0 offen")
            A("buffer_store_dwordx4 v[52:55], v44, s[40:43], 0 offen offset:16")
            A("s_branch L_end")
            A(f"{lg}:")
            for k, idx in enumerate((2, 1, 4, 6, 7, 8, 9, 10)):
                A(f"v_sub_u32 v{48+k}, v{32+idx}, v32")
            A("s_mov_b64 exec, 1")
            A("buffer_store_dwordx4 v[48:51], v44, s[40:43], 0 offen offset:32")
            A("buffer_store_dwordx4 v[52:55], v44, s[40:43], 0 offen offset:48")
    A("L_end:")
    return e.text()

if __name__ == "__main__":
    import argparse
    ap = argparse.ArgumentParser()
    ap.add_argument("-o", default="k8.s")
    ap.add_argument("--stamps", action="store_true")
    ap.add_argument("--nt", action="store_true")
    ap.add_argument("--f2_sleep", type=int, default=2)
    ap.add_argument("--st_sleep", type=int, default=2)
    ap.add_argument("--dbgid", type=int, default=-1)
    ap.add_argument("--wpre", type=int, default=24)
    a = ap.parse_args()
    body = gen(stamps=a.stamps, nt=a.nt, f2_sleep=a.f2_sleep, st_sleep=a.st_sleep, dbgid=a.dbgid, wpre=a.wpre)
    open(a.o, "w").write(single(body, 256, 512, 163840, 256, 102, 256))
```

```python
import sys
from asmlib import *

class E:
    def __init__(s):
        s.l = []; s.lab = 0
    def __call__(s, t): s.l.append(t)
    def label(s, p="L"):
        s.lab += 1
        return f"{p}_{s.lab}"
    def text(s): return "\n".join(s.l)

QA_OFF = 0
QVB_OFF = 256 << 10
FL2_OFF = 384 << 10
FL3_OFF = 400 << 10
EPOCH_OFF = 512 << 10
ST_OFF = 576 << 10
INBOX_OFF = 1 << 20
IB_STRIDE = 40960
CTX_REL = 32768
F2_REL = 34816
STP_REL = 36864
OUTB_OFF = 20 << 20
STAMP_OFF = 32 << 20

R1 = 131072
SP_L = R1
QV_L = R1 + 16384
G1S = R1 + 17408
AL_L = G1S
OP_L = G1S + 1024
QP_L = G1S + 1024
CP_L = G1S + 5120
CNT_L = R1 + 30720
STL = CNT_L + 256
OPP_L = 0
C_QP, C_QV, C_SP, C_POIS, C_OP, C_CP, C_OPP, C_G0DONE, C_QAACK, C_F3 = range(10)

sW, sP, sH, sJ, sB, sKB, sU, sTAG = 3, 4, 5, 6, 7, 8, 9, 11
SWS = 12
tA, tB, sG, sIB, sOB, sH5, sEX, sTO, sA1, sA2, sI, sM, sST, sST0, sX1, sTP = 16, 17, 18, 19, 20, 21, 22, 24, 25, 26, 27, 28, 30, 32, 33, 34
SX, SCKV, SWQ, SWUK, SWUV, SWO, SOUT = 36, 40, 44, 48, 52, 56, 60
PB = 36
def srd(r): return f"s[{r}:{r+3}]"
vL, vN, vK = 1, 2, 3
vSEL = 4
vL16, vN16, vSTA = 12, 14, 15
def vr(a, n): return f"v[{a}:{a+n-1}]"

def gen(stamps=False, timeout=100000, nt=False, f2_sleep=2, st_sleep=2, dbgid=-1, wpre=24, cpf=0):
    e = E(); A = e
    NT = " nt" if nt else ""
    def stamp(idx):
        if not stamps: return
        A(f"s_memrealtime s[{sST}:{sST+1}]")
        A("s_waitcnt lgkmcnt(0)")
        if idx == 0:
            A(f"s_mov_b32 s{sST0}, s{sST}")
        else:
            A(f"v_mov_b32 v29, s{sST}")
            A("s_mov_b64 exec, 1")
            A(f"ds_write_b32 v{vSTA}, v29 offset:{4*idx}")
            A("s_mov_b64 exec, -1")
    def build_A(dst, xreg, tp):
        for p in range(4):
            A(f"v_perm_b32 v{dst+p}, v{xreg}, v{xreg}, v{vSEL+4*tp+p}")
    def tree_sum4(base, n):
        step = 1
        while step < n:
            for q in range(0, n, 2*step):
                if q + step >= n: continue
                a, b2 = base + 4*q, base + 4*(q+step)
                A(f"v_pk_add_f32 {vr(a,2)}, {vr(a,2)}, {vr(b2,2)}")
                A(f"v_pk_add_f32 {vr(a+2,2)}, {vr(a+2,2)}, {vr(b2+2,2)}")
            step *= 2
    def poll(name, check, reissue, sleep=0):
        lp = e.label("L_" + name); lpd = e.label("L_" + name + "d")
        A(f"s_mov_b32 s{sTO}, {timeout}")
        A(f"{lp}:")
        check()
        A(f"s_cbranch_scc1 {lpd}")
        A(f"s_sub_u32 s{sTO}, s{sTO}, 1")
        A(f"s_cmp_eq_u32 s{sTO}, 0")
        A(f"s_cbranch_scc1 {lpd}")
        if sleep: A(f"s_sleep {sleep}")
        reissue()
        A("s_waitcnt vmcnt(0)")
        A(f"s_branch {lp}")
        A(f"{lpd}:")
    def spoll(name, soff, nblk, base, tagregs, sleep=0):
        lp = e.label("L_" + name); lpd = e.label("L_" + name + "d")
        A(f"s_mov_b32 s{sTO}, {timeout}")
        A(f"{lp}:")
        for k in range(nblk):
            A(f"s_load_dwordx16 s[{base+16*k}:{base+16*k+15}], s[{SWS}:{SWS+1}], s{soff} offset:{64*k} glc")
        A("s_waitcnt lgkmcnt(0)")
        if tagregs == "all":
            n = 16 * nblk
            A(f"s_xor_b64 s[{sM}:{sM+1}], s[{base}:{base+1}], s[{sTP}:{sTP+1}]")
            for k in range(2, n, 2):
                A(f"s_xor_b64 s[{sEX}:{sEX+1}], s[{base+k}:{base+k+1}], s[{sTP}:{sTP+1}]")
                A(f"s_or_b64 s[{sM}:{sM+1}], s[{sM}:{sM+1}], s[{sEX}:{sEX+1}]")
            A(f"s_cmp_eq_u64 s[{sM}:{sM+1}], 0")
        else:
            A(f"s_xor_b32 s{sM}, s{tagregs[0]}, s{sTAG}")
            for r in tagregs[1:]:
                A(f"s_xor_b32 s{sM+1}, s{r}, s{sTAG}")
                A(f"s_or_b32 s{sM}, s{sM}, s{sM+1}")
            A(f"s_cmp_eq_u32 s{sM}, 0")
        A(f"s_cbranch_scc1 {lpd}")
        A(f"s_sub_u32 s{sTO}, s{sTO}, 1")
        A(f"s_cmp_eq_u32 s{sTO}, 0")
        A(f"s_cbranch_scc1 {lpd}")
        if sleep: A(f"s_sleep {sleep}")
        A(f"s_branch {lp}")
        A(f"{lpd}:")
    def poison_check(regs, tmp):
        def f():
            r = list(regs)
            A(f"v_max3_u32 v{tmp}, v{r[0]}, v{r[1]}, v{r[2]}"); r = r[3:]
            while len(r) >= 2:
                A(f"v_max3_u32 v{tmp}, v{tmp}, v{r[0]}, v{r[1]}"); r = r[2:]
            if r:
                A(f"v_max_u32 v{tmp}, v{tmp}, v{r[0]}")
            A(f"v_cmp_eq_u32 vcc, -1, v{tmp}")
            A("s_nop 1")
            A("s_cmp_eq_u64 vcc, 0")
        return f
    def signal(c, areg=30):
        A("s_mov_b64 exec, 1")
        A(f"ds_add_u32 v{areg}, v31 offset:{4*c}")
        A("s_mov_b64 exec, -1")
    def arrive(c):
        A("s_waitcnt lgkmcnt(0)")
        signal(c)
    def wait_cnt(c, n, areg=30, sleep=0):
        lp = e.label("L_w"); lpd = e.label("L_wd")
        A(f"s_mov_b32 s{sTO}, {timeout*20}")
        A(f"{lp}:")
        A(f"ds_read_b32 v29, v{areg} offset:{4*c}")
        A("s_waitcnt lgkmcnt(0)")
        A(f"v_readfirstlane_b32 s{tB}, v29")
        A(f"s_sub_u32 s{sTO}, s{sTO}, 1")
        A(f"s_cmp_eq_u32 s{sTO}, 0")
        A(f"s_cbranch_scc1 {lpd}")
        A(f"s_cmp_ge_u32 s{tB}, {n}")
        A(f"s_cbranch_scc1 {lpd}")
        if sleep: A(f"s_sleep {sleep}")
        A(f"s_branch {lp}")
        A(f"{lpd}:")
    def gsync(c):
        arrive(c); wait_cnt(c, 4)
    def selectors():
        A(f"v_and_b32 v17, 1, v{vN}")
        A(f"v_bfe_u32 v18, v{vN}, 1, 2")
        A("v_cmp_eq_u32 vcc, 1, v17")
        for tp in range(2):
            lo = 0x0C0C0000 | ((2*tp+1) << 8) | (2*tp)
            hi = ((2*tp+1) << 24) | ((2*tp) << 16) | 0x0C0C
            A(f"v_mov_b32 v24, 0x{lo:08x}")
            A(f"v_mov_b32 v25, 0x{hi:08x}")
            A(f"v_cndmask_b32 v{26+tp}, v24, v25, vcc")
        A(f"v_mov_b32 v24, 0x0c0c0c0c")
        for p in range(4):
            A(f"v_cmp_eq_u32 vcc, {p}, v18")
            A("s_nop 1")
            for tp in range(2):
                A(f"v_cndmask_b32 v{vSEL+4*tp+p}, v24, v{26+tp}, vcc")
    def mk_tag():
        A("s_waitcnt lgkmcnt(0)")
        A(f"s_mul_i32 s{sTAG}, s{sTAG}, 0x9E3779B1")
        A(f"s_add_u32 s{sTAG}, s{sTAG}, 0x7F4A7C15")
        A(f"s_mov_b32 s{sTP}, s{sTAG}")
        A(f"s_mov_b32 s{sTP+1}, s{sTAG}")
    def dtile_addr(dst, tmp, bshift, sbase):
        A(f"v_lshrrev_b32 v{dst}, 1, v{vK}")
        A(f"v_lshlrev_b32 v{dst}, {bshift}, v{dst}")
        A(f"v_lshl_add_u32 v{dst}, v{vN}, 5, v{dst}")
        A(f"v_and_b32 v{tmp}, 1, v{vK}")
        A(f"v_lshl_add_u32 v{dst}, v{tmp}, 4, v{dst}")
        A(f"v_add_u32 v{dst}, s{sbase}, v{dst}")

    A("s_cmp_ge_u32 s2, 256")
    A("s_cbranch_scc1 L_end")
    stamp(0)
    A(f"s_and_b32 s{tA}, s2, 7")
    A(f"s_lshr_b32 s{tB}, s2, 6")
    A(f"s_lshl_b32 s{sG}, s{tA}, 2")
    A(f"s_add_u32 s{sG}, s{sG}, s{tB}")
    A(f"s_lshr_b32 s{sP}, s{sG}, 4")
    A(f"s_mul_i32 s10, s{sP}, 48")
    A(f"s_load_dwordx2 s[{SWS}:{SWS+1}], s[0:1], 112")
    for r, off in ((SX, 0), (SWQ, 16), (SWUK, 24), (SCKV, 8), (SWUV, 32), (SWO, 40)):
        A(f"s_load_dwordx2 s[{r}:{r+1}], s[0:1], s10 offset:{off}")
    A(f"s_and_b32 s{sH}, s{sG}, 15")
    A(f"s_lshr_b32 s{tA}, s2, 3")
    A(f"s_and_b32 s{sJ}, s{tA}, 7")
    A(f"s_lshl_b32 s{sU}, s{sH}, 3")
    A(f"s_add_u32 s{sU}, s{sU}, s{sJ}")
    A(f"s_lshr_b32 s{sB}, s{sU}, 6")
    A(f"s_and_b32 s{sKB}, s{sU}, 63")
    A(f"v_and_b32 v{vL}, 63, v0")
    A(f"v_and_b32 v{vN}, 15, v0")
    A(f"v_bfe_u32 v{vK}, v0, 4, 2")
    A(f"v_lshrrev_b32 v13, 6, v0")
    A("s_nop 0")
    A(f"v_readfirstlane_b32 s{sW}, v13")
    for r, sz in ((SX, 1792), (SCKV, 16777216), (SWQ, 3670016), (SWUK, 8388608), (SWUV, 8388608), (SWO, 3670016), (SWS, 268435456)):
        A(f"s_mov_b32 s{r+2}, {sz}")
        A(f"s_mov_b32 s{r+3}, 0x00020000")
    A(f"s_and_b32 s{sI}, s{sW}, 3")
    A(f"v_lshlrev_b32 v{vL16}, 4, v{vL}")
    A(f"v_lshlrev_b32 v{vN16}, 4, v{vN}")
    A(f"v_mov_b32 v30, {CNT_L}")
    A("v_mov_b32 v31, 1")
    A(f"v_lshlrev_b32 v{vSTA}, 6, v13")
    A(f"v_add_u32 v{vSTA}, {STL}, v{vSTA}")
    A(f"v_lshlrev_b32 v13, 2, v{vL}")
    A(f"v_add_u32 v13, {CNT_L}, v13")
    A("v_mov_b32 v29, 0")
    A("ds_write_b32 v13, v29")
    A(f"s_lshl_b32 s{sH5}, s{sH}, 9")
    A(f"s_lshl_b32 s{sIB}, s{sP}, 7")
    A(f"s_add_u32 s{sIB}, s{sIB}, s{sU}")
    A(f"s_mul_i32 s{sIB}, s{sIB}, {IB_STRIDE}")
    A(f"s_add_u32 s{sIB}, s{sIB}, {INBOX_OFF}")
    A(f"s_mul_i32 s{sOB}, s{sP}, 56")
    A(f"s_add_u32 s{sOB}, s{sOB}, s{sU}")
    A(f"s_lshl_b32 s{sOB}, s{sOB}, 13")
    A(f"s_add_u32 s{sOB}, s{sOB}, {OUTB_OFF}")
    A(f"s_lshl_b32 s{tA}, s{sI}, 2")
    A(f"v_add_u32 v28, s{tA}, v30")
    A("s_waitcnt lgkmcnt(0)")
    A(f"s_lshl_b32 s{tA}, s{sP}, 8")
    A(f"s_add_u32 s{tA}, s{tA}, {EPOCH_OFF}")
    A(f"s_load_dword s{sTAG}, s[{SWS}:{SWS+1}], s{tA}")
    A(f"s_cmp_ge_u32 s{sW}, 4")
    A("s_cbranch_scc1 L_G1")

    A("s_setprio 2")
    if cpf:
        lcp = e.label("L_nocpf")
        A(f"s_cmp_ge_u32 s2, {8*cpf}")
        A(f"s_cbranch_scc1 {lcp}")
        A("s_getpc_b64 s[64:65]")
        A("L_pcref:")
        A("s_sub_u32 s64, s64, L_pcref-" + KN + "_kernel")
        A("s_subb_u32 s65, s65, 0")
        A("s_mov_b32 s66, L_codeend-" + KN + "_kernel")
        A("s_mov_b32 s67, 0x00020000")
        A(f"s_lshl_b32 s{tA}, s{sI}, 12")
        for k in range(4):
            A(f"buffer_load_dwordx4 v[{240+4*k}:{243+4*k}], v{vL16}, s[64:67], s{tA} offen offset:{k*1024}")
        A(f"{lcp}:")
    WUK = 80; ACC = 176
    A(f"v_lshlrev_b32 v16, 13, v{vN}")
    A(f"v_lshl_add_u32 v16, v{vK}, 4, v16")
    A(f"s_lshl_b32 s{tA}, s{sJ}, 2")
    A(f"s_add_u32 s{tA}, s{tA}, s{sI}")
    A(f"s_lshl_b32 s{tA}, s{tA}, 18")
    A(f"s_add_u32 s{tA}, s{tA}, s{sH5}")
    A("s_barrier")
    for tl in range(2):
        if tl: A(f"s_add_u32 s{tA}, s{tA}, {16*8192}")
        for ks in range(8):
            A(f"buffer_load_dwordx4 {vr(WUK+(tl*8+ks)*4,4)}, v16, {srd(SWUK)}, s{tA} offen offset:{ks*64}{NT}")
    A("s_setprio 3")
    mk_tag()
    A(f"s_lshl_b32 s{sA1}, s{sG}, 11")
    A(f"s_lshl_b32 s{tA}, s{sI}, 9")
    A(f"s_add_u32 s{sA1}, s{sA1}, s{tA}")
    A(f"s_add_u32 s{sA1}, s{sA1}, {QVB_OFF}")
    for p in range(2):
        if p: A(f"s_add_u32 s{sA1}, s{sA1}, 256")
        spoll(f"qv{p}", sA1, 4, PB, [PB + 2*k + 1 for k in range(32)], sleep=1)
        for k in range(32):
            A(f"v_writelane_b32 v32, s{PB+2*k}, {32*p+k}")
    A("v_lshlrev_b32 v17, 1, v0")
    A(f"v_add_u32 v17, {QV_L}, v17")
    A("ds_write_b16 v17, v32")
    A("ds_write_b16_d16_hi v17, v32 offset:512")
    gsync(C_QV)
    A(f"v_and_b32 v17, 1, v{vN}")
    A("v_lshlrev_b32 v17, 9, v17")
    A(f"v_lshl_add_u32 v17, v{vK}, 4, v17")
    A(f"v_add_u32 v17, {QV_L}, v17")
    for ks in range(8):
        A(f"ds_read_b128 {vr(32+4*ks,4)}, v17 offset:{ks*64}")
    A("s_waitcnt lgkmcnt(0)")
    stamp(2)
    A("s_waitcnt vmcnt(0)")
    for ks in range(8):
        for tl in range(2):
            c = "0" if ks == 0 else vr(ACC+4*tl, 4)
            A(f"v_mfma_f32_16x16x32_bf16 {vr(ACC+4*tl,4)}, {vr(WUK+(tl*8+ks)*4,4)}, {vr(32+4*ks,4)}, {c}")
    A(f"v_lshlrev_b32 v17, 15, v{vN}")
    A(f"v_lshl_add_u32 v17, v{vK}, 3, v17")
    A(f"s_lshl_b32 s{tA}, s{sP}, 16")
    A(f"s_lshl_b32 s{tB}, s{sH}, 11")
    A(f"s_add_u32 s{tA}, s{tA}, s{tB}")
    A(f"s_lshl_b32 s{tB}, s{sJ}, 8")
    A(f"s_add_u32 s{tA}, s{tA}, s{tB}")
    A(f"s_lshl_b32 s{tB}, s{sI}, 6")
    A(f"s_add_u32 s{tA}, s{tA}, s{tB}")
    A("v_mov_b32 v32, 0x3db8aa3b")
    A("s_nop 1")
    for r in range(8):
        A(f"v_mul_f32 v{ACC+r}, v32, v{ACC+r}")
    for tl in range(2):
        A(f"v_cvt_pk_bf16_f32 v{ACC+8+2*tl}, v{ACC+4*tl}, v{ACC+4*tl+1}")
        A(f"v_cvt_pk_bf16_f32 v{ACC+9+2*tl}, v{ACC+4*tl+2}, v{ACC+4*tl+3}")
    A(f"v_cmp_gt_u32 vcc, 2, v{vN}")
    A(f"s_and_saveexec_b64 s[{sEX}:{sEX+1}], vcc")
    for tl in range(2):
        A(f"buffer_store_dwordx2 {vr(ACC+8+2*tl,2)}, v17, {srd(SWS)}, s{tA} offen offset:{32*tl} sc1")
    A(f"s_mov_b64 exec, s[{sEX}:{sEX+1}]")
    QAr = 32; CA = 64; SA = 192; AD = 208; TD = 20
    A(f"s_lshl_b32 s{sX1}, s{sI}, 15")
    for ks in range(4):
        A(f"v_add_u32 v{AD+ks}, {4*ks}, v{vK}")
        A(f"v_xor_b32 v{AD+ks}, v{AD+ks}, v{vN}")
        A(f"v_lshlrev_b32 v{AD+ks}, 4, v{AD+ks}")
        A(f"v_lshl_add_u32 v{AD+ks}, v{vN}, 8, v{AD+ks}")
        A(f"v_add_u32 v{AD+ks}, s{sX1}, v{AD+ks}")
    A(f"v_lshrrev_b32 v{AD+4}, 2, v{vN}")
    A(f"v_and_b32 v{AD+5}, 3, v{vN}")
    A(f"v_lshl_add_u32 v{AD+6}, v{vK}, 2, v{AD+4}")
    A(f"v_lshlrev_b32 v{AD+6}, 8, v{AD+6}")
    A(f"v_add_u32 v{AD+6}, s{sX1}, v{AD+6}")
    A(f"v_xor_b32 v{AD+7}, v{AD+5}, v{vK}")
    A(f"v_lshl_add_u32 v{AD+6}, v{AD+7}, 6, v{AD+6}")
    A(f"v_and_b32 v{AD+5}, 1, v{AD+5}")
    for t in range(8):
        tau, hb = t >> 1, t & 1
        A(f"v_xor_b32 v{AD+7}, {tau}, v{AD+4}")
        A(f"v_lshl_add_u32 v{TD+t}, v{AD+7}, 4, v{AD+6}")
        A(f"v_xor_b32 v{AD+7}, {hb}, v{AD+5}")
        A(f"v_lshl_add_u32 v{TD+t}, v{AD+7}, 3, v{TD+t}")
    wait_cnt(C_POIS, 4)
    A("s_waitcnt vmcnt(0)")
    A("s_mov_b64 exec, 1")
    A(f"ds_add_rtn_u32 v29, v30, v31 offset:{4*C_QAACK}")
    A("s_waitcnt lgkmcnt(0)")
    A(f"v_readfirstlane_b32 s{tB}, v29")
    lnf = e.label("L_nof2")
    A(f"s_cmp_lg_u32 s{tB}, 3")
    A(f"s_cbranch_scc1 {lnf}")
    A("s_mov_b64 exec, -1")
    A(f"s_mul_i32 s{tA}, s{sP}, {128*IB_STRIDE}")
    A(f"s_lshl_b32 s{tB}, s{sJ}, 6")
    A(f"s_add_u32 s{tA}, s{tA}, s{tB}")
    A(f"s_lshl_b32 s{tB}, s{sH}, 2")
    A(f"s_add_u32 s{tA}, s{tA}, s{tB}")
    A(f"s_add_u32 s{tA}, s{tA}, {INBOX_OFF + F2_REL}")
    A(f"s_mov_b32 s{tB}, {IB_STRIDE}")
    A(f"v_mul_lo_u32 v17, v{vL}, s{tB}")
    A(f"v_mov_b32 v29, s{sTAG}")
    A(f"buffer_store_dword v29, v17, {srd(SWS)}, s{tA} offen sc1")
    A(f"s_add_u32 s{tA}, s{tA}, {64*IB_STRIDE}")
    A(f"buffer_store_dword v29, v17, {srd(SWS)}, s{tA} offen sc1")
    A(f"{lnf}:")
    A("s_mov_b64 exec, -1")
    stamp(3)
    A(f"s_lshl_b32 s{tA}, s{sI}, 7")
    A(f"s_add_u32 s{sA1}, s{sIB}, s{tA}")
    A(f"s_add_u32 s{sA1}, s{sA1}, {F2_REL}")
    A(f"v_lshlrev_b32 v18, 11, v{vN}")
    A(f"v_lshl_add_u32 v18, v{vK}, 4, v18")
    A(f"s_lshl_b32 s{sA2}, s{sP}, 1")
    A(f"s_add_u32 s{sA2}, s{sA2}, s{sB}")
    A(f"s_lshl_b32 s{sA2}, s{sA2}, 15")
    A(f"s_lshl_b32 s{tA}, s{sI}, 9")
    A(f"s_add_u32 s{sA2}, s{sA2}, s{tA}")
    spoll("f2", sA1, 2, PB, "all", sleep=f2_sleep)
    for k8 in range(8):
        A(f"buffer_load_dwordx4 {vr(QAr+4*k8,4)}, v18, {srd(SWS)}, s{sA2} offen offset:{k8*64} sc1")
    stamp(5)
    wait_cnt(16, 1, areg=28, sleep=1)
    stamp(4)
    for cr in range(2):
        for kt in range(4):
            for ks in range(4):
                A(f"ds_read_b128 {vr(CA+cr*64+(kt*4+ks)*4,4)}, v{AD+ks} offset:{cr*16384+kt*4096}")
    A("s_waitcnt vmcnt(0) lgkmcnt(0)")
    for cr in range(2):
        for ks in range(4):
            for kt in range(4):
                c = "0" if (cr == 0 and ks == 0) else vr(SA+4*kt, 4)
                A(f"v_mfma_f32_16x16x32_bf16 {vr(SA+4*kt,4)}, {vr(CA+cr*64+(kt*4+ks)*4,4)}, {vr(QAr+(cr*4+ks)*4,4)}, {c}")
    A(f"s_lshl_b32 s{tA}, s{sI}, 12")
    A(f"s_add_u32 s{tA}, s{tA}, {SP_L}")
    A(f"v_add_u32 v17, s{tA}, v{vL16}")
    A("s_nop 7")
    for kt in range(4):
        A(f"ds_write_b128 v17, {vr(SA+4*kt,4)} offset:{kt*1024}")
    arrive(C_SP)
    stamp(7)
    CT = 64
    for cr in range(2):
        for t in range(8):
            for ks2 in range(2):
                for u in range(2):
                    A(f"ds_read_b64_tr_b16 {vr(CT+cr*64+(t*2+ks2)*4+2*u,2)}, v{TD+t} offset:{cr*16384+(32*ks2+16*u)*256}")
    wait_cnt(C_SP, 4)
    stamp(8)
    A(f"v_add_u32 v17, {SP_L}, v{vL16}")
    for w2 in range(4):
        for kt in range(4):
            A(f"ds_read_b128 {vr(192+w2*16+kt*4,4)}, v17 offset:{w2*4096+kt*1024}")
    A("s_waitcnt lgkmcnt(0)")
    for r in range(0, 16, 2):
        A(f"v_pk_add_f32 {vr(192+r,2)}, {vr(192+r,2)}, {vr(208+r,2)}")
        A(f"v_pk_add_f32 {vr(224+r,2)}, {vr(224+r,2)}, {vr(240+r,2)}")
    for r in range(0, 16, 2):
        A(f"v_pk_add_f32 {vr(192+r,2)}, {vr(192+r,2)}, {vr(224+r,2)}")
    A(f"v_max3_f32 v48, v{SA}, v{SA+1}, v{SA+2}")
    for i in range(3, 15, 2):
        A(f"v_max3_f32 v48, v48, v{SA+i}, v{SA+i+1}")
    A(f"v_max_f32 v48, v48, v{SA+15}")
    A("v_mov_b32 v49, v48"); A("s_nop 1"); A("v_permlane32_swap_b32 v48, v49"); A("v_max_f32 v48, v48, v49")
    A("v_mov_b32 v49, v48"); A("s_nop 1"); A("v_permlane16_swap_b32 v48, v49"); A("v_max_f32 v48, v48, v49")
    for i in range(16): A(f"v_sub_f32 v{SA+i}, v{SA+i}, v48")
    for i in range(16): A(f"v_exp_f32 v{SA+i}, v{SA+i}")
    A("s_nop 0")
    for ks2 in range(2):
        for q in range(4):
            s = SA + 8*ks2 + 2*q
            A(f"v_cvt_pk_bf16_f32 v{32+4*ks2+q}, v{s}, v{s+1}")
    A(f"v_add_f32 v49, v{SA}, v{SA+1}")
    for i in range(2, 16): A(f"v_add_f32 v49, v49, v{SA+i}")
    OA = 192
    A("s_nop 1")
    for cr in range(2):
        for t in range(8):
            A(f"v_mfma_f32_16x16x32_bf16 {vr(OA+cr*32+4*t,4)}, {vr(CT+cr*64+(t*2)*4,4)}, v[32:35], 0")
        for t in range(8):
            A(f"v_mfma_f32_16x16x32_bf16 {vr(OA+cr*32+4*t,4)}, {vr(CT+cr*64+(t*2+1)*4,4)}, v[36:39], {vr(OA+cr*32+4*t,4)}")
    signal(C_G0DONE)
    stamp(9)
    A("v_mov_b32 v50, v49"); A("s_nop 1"); A("v_permlane32_swap_b32 v49, v50"); A("v_add_f32 v49, v49, v50")
    A("v_mov_b32 v50, v49"); A("s_nop 1"); A("v_permlane16_swap_b32 v49, v50"); A("v_add_f32 v49, v49, v50")
    A(f"s_mov_b32 s{tA}, {IB_STRIDE*8}")
    A(f"v_mul_lo_u32 v17, v{vN}, s{tA}")
    A(f"v_lshl_add_u32 v18, v{vK}, 4, v17")
    A(f"s_lshl_b32 s{tA}, s{sP}, 7")
    A(f"s_lshl_b32 s{tB}, s{sI}, 1")
    A(f"s_add_u32 s{tA}, s{tA}, s{tB}")
    A(f"s_mul_i32 s{tA}, s{tA}, {IB_STRIDE}")
    A(f"s_add_u32 s{tA}, s{tA}, {INBOX_OFF}")
    A(f"s_lshl_b32 s{tB}, s{sU}, 8")
    A(f"s_add_u32 s{sA1}, s{tA}, s{tB}")
    for cr in range(2):
        if cr:
            A(f"s_add_u32 s{sA1}, s{sA1}, {IB_STRIDE}")
        for tau in range(4):
            d = 64 + cr*16 + 4*tau
            a, b2 = OA + cr*32 + 8*tau, OA + cr*32 + 8*tau + 4
            A(f"v_cvt_pk_bf16_f32 v{d}, v{a}, v{a+1}")
            A(f"v_cvt_pk_bf16_f32 v{d+1}, v{a+2}, v{a+3}")
            A(f"v_cvt_pk_bf16_f32 v{d+2}, v{b2}, v{b2+1}")
            A(f"v_cvt_pk_bf16_f32 v{d+3}, v{b2+2}, v{b2+3}")
            A(f"buffer_store_dwordx4 {vr(d,4)}, v18, {srd(SWS)}, s{sA1} offen offset:{tau*64} sc1")
    stamp(6)
    A(f"s_mov_b32 s{tB}, {IB_STRIDE}")
    A(f"v_mul_lo_u32 v16, v{vK}, s{tB}")
    A("v_add_u32 v17, v17, v16")
    A(f"s_lshl_b32 s{tB}, s{sU}, 4")
    A(f"s_add_u32 s{tA}, s{tA}, s{tB}")
    A(f"s_add_u32 s{tA}, s{tA}, {STP_REL}")
    A(f"v_mov_b32 v50, s{sTAG}")
    A("v_mov_b32 v51, 0")
    A("s_waitcnt vmcnt(0)")
    A("s_mov_b32 exec_hi, 0")
    A(f"buffer_store_dwordx4 v[48:51], v17, {srd(SWS)}, s{tA} offen sc1")
    A("s_mov_b64 exec, -1")
    signal(C_F3)
    stamp(10)
    A(f"s_cmp_ge_u32 s{sU}, 56")
    A("s_cbranch_scc1 L_fin")
    A(f"s_cmp_lg_u32 s{sI}, 0")
    A("s_cbranch_scc1 L_fin")
    A(f"s_load_dwordx2 s[{SOUT}:{SOUT+1}], s[0:1], 96")
    A(f"s_mov_b32 s{SOUT+2}, 3584")
    A(f"s_mov_b32 s{SOUT+3}, 0x00020000")
    wait_cnt(C_OPP, 5, sleep=1)
    A(f"s_add_u32 s{tA}, s{sOB}, 4096")
    def ob_loads():
        for i in range(4):
            A(f"buffer_load_dwordx4 {vr(32+4*i,4)}, v{vL16}, {srd(SWS)}, s{sOB} offen offset:{i*1024} sc1")
        for i in range(4):
            A(f"buffer_load_dwordx4 {vr(48+4*i,4)}, v{vL16}, {srd(SWS)}, s{tA} offen offset:{i*1024} sc1")
    ob_loads()
    A("s_waitcnt vmcnt(0)")
    poll("ob", poison_check(range(32, 64), 64), ob_loads)
    tree_sum4(32, 8)
    for rot in (4, 8):
        A("s_nop 1")
        for r in range(32, 36):
            A(f"v_add_f32_dpp v{r}, v{r}, v{r} row_ror:{rot} row_mask:0xf bank_mask:0xf")
    for r in range(32, 36):
        A(f"v_mov_b32 v40, v{r}"); A("s_nop 1"); A(f"v_permlane16_swap_b32 v{r}, v40"); A(f"v_add_f32 v{r}, v{r}, v40")
        A(f"v_mov_b32 v40, v{r}"); A("s_nop 1"); A(f"v_permlane32_swap_b32 v{r}, v40"); A(f"v_add_f32 v{r}, v{r}, v40")
    A("v_cvt_pk_bf16_f32 v36, v32, v33")
    A("v_cvt_pk_bf16_f32 v37, v34, v35")
    A(f"s_cmp_ge_u32 s{sU}, 28")
    A(f"s_cselect_b32 s{tA}, 896, 0")
    A(f"s_mul_i32 s{tB}, s{sP}, 896")
    A(f"s_add_u32 s{tA}, s{tA}, s{tB}")
    A(f"s_lshl_b32 s{tB}, s{sU}, 5")
    A(f"s_add_u32 s{tA}, s{tA}, s{tB}")
    A(f"v_lshlrev_b32 v40, 3, v{vL}")
    A("s_mov_b64 exec, 15")
    A(f"buffer_store_dwordx2 v[36:37], v40, {srd(SOUT)}, s{tA} offen")
    A("s_mov_b64 exec, -1")
    A(f"s_cmp_lg_u32 s{sU}, 0")
    A("s_cbranch_scc1 L_fin")
    A(f"s_lshl_b32 s{tA}, s{sP}, 8")
    A(f"s_add_u32 s{tA}, s{tA}, {EPOCH_OFF}")
    A(f"v_mov_b32 v40, s{sTAG}")
    A("v_mov_b32 v41, 0")
    A("s_mov_b64 exec, 1")
    A(f"buffer_store_dword v40, v41, {srd(SWS)}, s{tA} offen sc1")
    A("s_mov_b64 exec, -1")
    A("s_branch L_fin")

    A("L_G1:")
    A("s_setprio 3")
    vX = 32; WQ = 48; AOP = 192
    A(f"v_lshrrev_b32 v13, 3, v{vN}")
    A("v_mul_u32_u24 v13, 896, v13")
    A(f"v_mad_u32_u24 v13, v{vK}, 56, v13")
    A(f"s_mul_i32 s{tA}, s{sI}, 224")
    for q in range(3):
        A(f"buffer_load_dwordx4 {vr(vX+4*q,4)}, v13, {srd(SX)}, s{tA} offen offset:{16*q}")
    A(f"buffer_load_dwordx2 {vr(vX+12,2)}, v13, {srd(SX)}, s{tA} offen offset:48")
    A(f"v_lshrrev_b32 v19, 2, v{vN}")
    A(f"v_mad_u32_u24 v19, v{vK}, 28, v19")
    A("v_lshlrev_b32 v19, 13, v19")
    A(f"v_and_b32 v16, 3, v{vN}")
    A("v_lshl_add_u32 v19, v16, 4, v19")
    A(f"s_mul_i32 s{tA}, s{sI}, {112*8192}")
    A(f"s_add_u32 s{tA}, s{tA}, s{sH5}")
    A(f"s_lshl_b32 s{tB}, s{sJ}, 6")
    A(f"s_add_u32 s{tA}, s{tA}, s{tB}")
    for t in range(7):
        if t > 0: A(f"s_add_u32 s{tA}, s{tA}, {4*8192}")
        A(f"buffer_load_dwordx4 {vr(WQ+4*t,4)}, v19, {srd(SWQ)}, s{tA} offen{NT}")
    A("s_barrier")
    selectors()
    mk_tag()
    A("s_waitcnt vmcnt(6)")
    seq = [(t, a) for t in range(7) for a in range(4)]
    build_A(AOP, vX, 0)
    for n, (t, a) in enumerate(seq):
        cur = AOP + 4*(n & 1)
        if n + 1 < len(seq):
            t2, a2 = seq[n+1]
            build_A(AOP + 4*((n+1) & 1), vX + ((4*t2+a2) >> 1), a2 & 1)
        else:
            A("s_nop 1")
        if a == 0 and t > 0:
            A(f"s_waitcnt vmcnt({6 - t})")
        c = "0" if t == 0 else vr(ACC+4*a, 4)
        A(f"v_mfma_f32_16x16x32_bf16 {vr(ACC+4*a,4)}, {vr(cur,4)}, {vr(WQ+4*t,4)}, {c}")
    A(f"v_lshrrev_b32 v17, 2, v{vN}")
    A("s_nop 7")
    for a in range(1, 4):
        A(f"v_cmp_eq_u32 vcc, {a}, v17")
        A("s_nop 1")
        for r in range(4):
            A(f"v_cndmask_b32 v{ACC+r}, v{ACC+r}, v{ACC+4*a+r}, vcc")
    for rot in (4, 8):
        A("s_nop 1")
        for r in range(4):
            A(f"v_add_f32_dpp v{ACC+r}, v{ACC+r}, v{ACC+r} row_ror:{rot} row_mask:0xf bank_mask:0xf")
    A(f"s_lshl_b32 s{tA}, s{sI}, 8")
    A(f"s_add_u32 s{tA}, s{tA}, {QP_L}")
    dtile_addr(17, 18, 7, tA)
    A(f"v_cmp_gt_u32 vcc, 4, v{vN}")
    A(f"s_and_saveexec_b64 s[{sEX}:{sEX+1}], vcc")
    A(f"ds_write_b128 v17, {vr(ACC,4)}")
    A(f"s_mov_b64 exec, s[{sEX}:{sEX+1}]")
    arrive(C_QP)
    lq0 = e.label("L_q0")
    A(f"s_cmp_lg_u32 s{sI}, 0")
    A(f"s_cbranch_scc1 {lq0}")
    wait_cnt(C_QP, 4)
    A(f"v_lshlrev_b32 v17, 2, v{vL}")
    A(f"v_add_u32 v17, {QP_L}, v17")
    for w2 in range(4):
        A(f"ds_read_b32 v{32+w2}, v17 offset:{w2*256}")
    A("s_waitcnt lgkmcnt(0)")
    A("v_add_f32 v32, v32, v33"); A("v_add_f32 v34, v34, v35"); A("v_add_f32 v32, v32, v34")
    A("v_mov_b32 v33, v32"); A("s_nop 1")
    A("v_permlane32_swap_b32 v32, v33")
    A("s_nop 0")
    A("v_cvt_pk_bf16_f32 v34, v32, v33")
    A(f"v_mov_b32 v35, s{sTAG}")
    A(f"v_lshlrev_b32 v17, 3, v{vL}")
    A(f"s_lshl_b32 s{tA}, s{sG}, 11")
    A(f"s_lshl_b32 s{tB}, s{sJ}, 8")
    A(f"s_add_u32 s{tA}, s{tA}, s{tB}")
    A(f"s_add_u32 s{tA}, s{tA}, {QVB_OFF}")
    A("s_mov_b32 exec_hi, 0")
    A(f"buffer_store_dwordx2 v[34:35], v17, {srd(SWS)}, s{tA} offen sc1")
    A("s_mov_b64 exec, -1")
    A(f"{lq0}:")
    stamp(2)
    A("s_setprio 0")
    for i in range(4): A(f"v_mov_b32 v{40+i}, -1")
    lp1 = e.label("L_p1")
    A(f"s_cmp_ge_u32 s{sI}, 2")
    A(f"s_cbranch_scc1 {lp1}")
    A(f"s_lshl_b32 s{tA}, s{sI}, 10")
    A(f"s_add_u32 s{tA}, s{tA}, s{sIB}")
    A(f"s_add_u32 s{tA}, s{tA}, {CTX_REL}")
    A(f"buffer_store_dwordx4 v[40:43], v{vL16}, {srd(SWS)}, s{tA} offen sc1")
    A(f"{lp1}:")
    lp2 = e.label("L_p2")
    A(f"s_cmp_ge_u32 s{sU}, 56")
    A(f"s_cbranch_scc1 {lp2}")
    A(f"s_lshl_b32 s{tA}, s{sI}, 11")
    A(f"s_add_u32 s{tA}, s{tA}, s{sOB}")
    A(f"buffer_store_dwordx4 v[40:43], v{vL16}, {srd(SWS)}, s{tA} offen sc1")
    A(f"buffer_store_dwordx4 v[40:43], v{vL16}, {srd(SWS)}, s{tA} offen offset:1024 sc1")
    A(f"{lp2}:")
    VC = 36
    for tt in range(4):
        A(f"v_add_u32 v{VC+tt}, {4*tt}, v{vK}")
        A(f"v_xor_b32 v{VC+tt}, v{VC+tt}, v{vN}")
        A(f"v_lshlrev_b32 v{VC+tt}, 4, v{VC+tt}")
        A(f"v_lshl_add_u32 v{VC+tt}, v{vK}, 11, v{VC+tt}")
    WUV = 64; WO = 128
    A(f"v_lshrrev_b32 v17, 1, v{vK}")
    A(f"v_and_b32 v19, 1, v{vK}")
    A("v_xor_b32 v19, v19, v17")
    A(f"v_lshl_add_u32 v19, v19, 15, v{vN16}")
    A("v_lshl_add_u32 v19, v17, 18, v19")
    A(f"s_lshl_b32 s{sA2}, s{sJ}, 7")
    A(f"s_lshl_b32 s{tA}, s{sI}, 3")
    A(f"s_add_u32 s{sA2}, s{sA2}, s{tA}")
    A(f"s_lshl_b32 s{sA2}, s{sA2}, 13")
    A(f"s_add_u32 s{sA2}, s{sA2}, s{sH5}")
    A("v_mov_b32 v17, 1792")
    A(f"v_mad_u32_u24 v17, v{vK}, v17, v{vN16}")
    A(f"s_lshl_b32 s10, s{sU}, 2")
    A(f"s_add_u32 s10, s10, s{sI}")
    A(f"s_mul_i32 s10, s10, {8*896}")
    A(f"v_cmp_gt_u32 s[{sM}:{sM+1}], 8, v{vN}")
    A(f"s_lshl_b32 s{sA1}, s{sB}, 23")
    A(f"s_lshl_b32 s{tA}, s{sKB}, 17")
    A(f"s_add_u32 s{sA1}, s{sA1}, s{tA}")
    A(f"s_lshl_b32 s{tA}, s{sI}, 9")
    A(f"s_add_u32 s{sA1}, s{sA1}, s{tA}")
    A(f"s_lshl_b32 s{sX1}, s{sI}, 15")
    ops = []
    def wuv_op(n):
        q, dh = n >> 1, n & 1
        A(f"s_add_u32 s{tA}, s{sA2}, {(64*(q>>2) + (q&3))*8192}")
        A(f"buffer_load_dwordx4 {vr(WUV+n*4,4)}, v19, {srd(SWUV)}, s{tA} offen offset:{dh*256}{NT}")
    def wo_op(n):
        q, cb = n >> 2, n & 3
        A(f"s_add_u32 s{tA}, s10, {q*896}")
        if cb == 3: A(f"s_mov_b64 exec, s[{sM}:{sM+1}]")
        A(f"buffer_load_dwordx4 {vr(WO+n*4,4)}, v17, {srd(SWO)}, s{tA} offen offset:{cb*256}{NT}")
        if cb == 3: A("s_mov_b64 exec, -1")
    def ck_op(n):
        t, cr = n >> 1, n & 1
        A(f"s_add_u32 s{tA}, s{sX1}, {cr*16384 + t*1024}")
        A(f"s_mov_b32 m0, s{tA}")
        A(f"s_add_u32 s{tB}, s{sA1}, {t*4*2048 + cr*256}")
        A(f"buffer_load_dwordx4 v{VC+(t&3)}, {srd(SCKV)}, s{tB} offen{NT} lds")
    wl = [(wuv_op, n) for n in range(16)] + [(wo_op, n) for n in range(8)]
    seqo = wl[:wpre] + [(ck_op, n) for n in range(32)]
    post = wl[wpre:]
    for k, (f, n) in enumerate(seqo):
        f(n)
        if k == 3:
            A("s_waitcnt vmcnt(4)")
            signal(C_POIS)
    stamp(1)
    npost = min(len(post), 8)
    for f, n in post[:npost]: f(n)
    A(f"s_waitcnt vmcnt({npost})")
    signal(16, areg=28)
    stamp(4)
    for f, n in post[npost:]: f(n)
    A("s_setprio 2")
    IB = 160
    A(f"v_lshl_add_u32 v18, v{vK}, 11, v{vN16}")
    A(f"s_lshl_b32 s{sA2}, s{sI}, 13")
    A(f"s_add_u32 s{sA2}, s{sA2}, s{sIB}")
    A(f"s_lshr_b32 s{sX1}, s{sI}, 1")
    A(f"s_lshl_b32 s{sX1}, s{sX1}, 10")
    A(f"s_add_u32 s{sX1}, s{sX1}, s{sIB}")
    A(f"s_add_u32 s{sX1}, s{sX1}, {STP_REL}")
    def st_loads():
        A(f"buffer_load_dwordx3 v[48:50], v{vL16}, {srd(SWS)}, s{sX1} offen sc1")
    def st_check():
        A(f"v_cmp_ne_u32 vcc, s{sTAG}, v50")
        A("s_nop 1")
        A("s_cmp_eq_u64 vcc, 0")
    if stamps:
        A("s_waitcnt vmcnt(0)")
        stamp(3)
    wait_cnt(C_F3, 4, sleep=2)
    stamp(5)
    st_loads()
    A("s_waitcnt vmcnt(0)")
    poll("st", st_check, st_loads, sleep=st_sleep)
    stamp(6)
    for q in range(8):
        A(f"buffer_load_dwordx4 {vr(IB+4*q,4)}, v18, {srd(SWS)}, s{sA2} offen offset:{q*256} sc1")
    def wave_reduce(op, r, t):
        for dpp in ("quad_perm:[1,0,3,2]", "quad_perm:[2,3,0,1]", "row_half_mirror", "row_mirror"):
            A("s_nop 1")
            A(f"{op}_dpp v{r}, v{r}, v{r} {dpp} row_mask:0xf bank_mask:0xf")
        A(f"v_mov_b32 v{t}, v{r}"); A("s_nop 1"); A(f"v_permlane16_swap_b32 v{r}, v{t}"); A(f"{op} v{r}, v{r}, v{t}")
        A(f"v_mov_b32 v{t}, v{r}"); A("s_nop 1"); A(f"v_permlane32_swap_b32 v{r}, v{t}"); A(f"{op} v{r}, v{r}, v{t}")
    A("v_mov_b32 v50, v48")
    wave_reduce("v_max_f32", 50, 51)
    A("v_sub_f32 v48, v48, v50")
    A("v_exp_f32 v48, v48")
    A("s_nop 0")
    A("v_mul_f32 v49, v49, v48")
    wave_reduce("v_add_f32", 49, 51)
    A("v_rcp_f32 v49, v49")
    A("s_nop 0")
    A("v_mul_f32 v48, v48, v49")
    A(f"s_lshl_b32 s{tB}, s{sI}, 8")
    A(f"s_add_u32 s{tB}, s{tB}, {AL_L}")
    A(f"v_lshlrev_b32 v50, 2, v{vL}")
    A(f"v_add_u32 v50, s{tB}, v50")
    A("ds_write_b32 v50, v48")
    A(f"s_and_b32 s{tA}, s{sI}, 1")
    A(f"s_lshl_b32 s{tA}, s{tA}, 7")
    A(f"s_add_u32 s{tB}, s{tB}, s{tA}")
    A(f"v_lshlrev_b32 v50, 5, v{vK}")
    A(f"v_add_u32 v50, s{tB}, v50")
    A("s_waitcnt lgkmcnt(0)")
    A("ds_read_b128 v[40:43], v50")
    A("ds_read_b128 v[44:47], v50 offset:16")
    A("s_waitcnt lgkmcnt(0)")
    for q in range(4):
        A(f"v_cvt_pk_bf16_f32 v{52+q}, v{40+2*q}, v{41+2*q}")
    for q in range(4):
        A(f"v_lshlrev_b32 v60, 16, v{52+q}"); A(f"v_and_b32 v61, 0xffff0000, v{52+q}")
        A(f"v_sub_f32 v{40+2*q}, v{40+2*q}, v60"); A(f"v_sub_f32 v{41+2*q}, v{41+2*q}, v61")
        A(f"v_cvt_pk_bf16_f32 v{56+q}, v{40+2*q}, v{41+2*q}")
    A(f"v_cmp_lt_u32 vcc, 7, v{vN}")
    A("s_nop 1")
    for q in range(4):
        A(f"v_cndmask_b32 v{52+q}, v{52+q}, v{56+q}, vcc")
    AOPS = 192
    for q in range(8): build_A(AOPS + 4*q, 52 + (q >> 1), q & 1)
    A("s_waitcnt vmcnt(0)")
    stamp(7)
    for q in range(8):
        c = "0" if q == 0 else "v[40:43]"
        A(f"v_mfma_f32_16x16x32_bf16 v[40:43], {vr(AOPS+4*q,4)}, {vr(IB+4*q,4)}, {c}")
    A(f"s_lshl_b32 s{tA}, s{sI}, 10")
    A(f"s_add_u32 s{tA}, s{tA}, {OP_L}")
    dtile_addr(50, 51, 9, tA)
    A("s_nop 4")
    A("ds_write_b128 v50, v[40:43]")
    gsync(C_OP)
    A(f"v_lshrrev_b32 v19, 3, v{vN}")
    A("v_lshlrev_b32 v19, 11, v19")
    A(f"v_lshl_add_u32 v19, v{vK}, 4, v19")
    A(f"s_lshl_b32 s{tB}, s{sI}, 7")
    A(f"s_add_u32 s{tB}, s{tB}, {OP_L}")
    A(f"v_add_u32 v19, s{tB}, v19")
    for hh in range(2):
        for q in range(4):
            A(f"ds_read_b128 {vr(160+hh*16+4*q,4)}, v19 offset:{q*512+hh*64}")
    A("s_waitcnt lgkmcnt(0)")
    tree_sum4(160, 4); tree_sum4(176, 4)
    A("v_cvt_pk_bf16_f32 v52, v160, v161"); A("v_cvt_pk_bf16_f32 v53, v162, v163")
    A("v_cvt_pk_bf16_f32 v54, v176, v177"); A("v_cvt_pk_bf16_f32 v55, v178, v179")
    for q in range(8): build_A(AOPS + 4*q, 52 + (q >> 1), q & 1)
    A("s_nop 1")
    for q in range(8):
        for dh in range(2):
            c = "0" if q == 0 else vr(40+4*dh, 4)
            A(f"v_mfma_f32_16x16x32_bf16 {vr(40+4*dh,4)}, {vr(AOPS+4*q,4)}, {vr(WUV+(2*q+dh)*4,4)}, {c}")
    A(f"s_lshl_b32 s{tA}, s{sI}, 11")
    A(f"s_add_u32 s{tA}, s{tA}, {CP_L}")
    dtile_addr(50, 51, 10, tA)
    A("s_nop 6")
    A("ds_write_b128 v50, v[40:43]")
    A("ds_write_b128 v50, v[44:47] offset:512")
    arrive(C_CP)
    lc = e.label("L_noctx")
    A(f"s_cmp_ge_u32 s{sI}, 2")
    A(f"s_cbranch_scc1 {lc}")
    wait_cnt(C_CP, 4)
    A(f"s_lshl_b32 s{tB}, s{sI}, 10")
    A(f"s_add_u32 s{tB}, s{tB}, {CP_L}")
    A(f"v_add_u32 v19, s{tB}, v{vL16}")
    for w2 in range(4):
        A(f"ds_read_b128 {vr(160+4*w2,4)}, v19 offset:{w2*2048}")
    A("s_waitcnt lgkmcnt(0)")
    tree_sum4(160, 4)
    A(f"v_lshrrev_b32 v50, 3, v{vL}")
    A(f"s_mov_b32 s{tA}, {IB_STRIDE}")
    A(f"v_mul_lo_u32 v50, v50, s{tA}")
    A(f"v_and_b32 v51, 7, v{vL}")
    A("v_lshl_add_u32 v50, v51, 4, v50")
    A(f"s_mul_i32 s{tA}, s{sG}, {8*IB_STRIDE}")
    A(f"s_add_u32 s{tA}, s{tA}, {INBOX_OFF + CTX_REL}")
    A(f"s_lshl_b32 s{tB}, s{sJ}, 8")
    A(f"s_add_u32 s{tA}, s{tA}, s{tB}")
    A(f"s_lshl_b32 s{tB}, s{sI}, 7")
    A(f"s_add_u32 s{tA}, s{tA}, s{tB}")
    A(f"buffer_store_dwordx4 v[160:163], v50, {srd(SWS)}, s{tA} offen sc1")
    A(f"{lc}:")
    stamp(8)
    A(f"v_lshrrev_b32 v19, 3, v{vN}")
    A("v_lshlrev_b32 v19, 7, v19")
    A(f"v_lshl_add_u32 v19, v{vK}, 3, v19")
    A(f"s_lshl_b32 s{sA2}, s{sI}, 5")
    A(f"s_add_u32 s{sA2}, s{sA2}, s{sIB}")
    A(f"s_add_u32 s{sA2}, s{sA2}, {CTX_REL}")
    def cx_loads():
        for s in range(8):
            A(f"buffer_load_dwordx2 {vr(176+2*s,2)}, v19, {srd(SWS)}, s{sA2} offen offset:{s*256} sc1")
    cx_loads()
    A("s_waitcnt vmcnt(0)")
    poll("cx", poison_check(range(176, 192), 50), cx_loads)
    stamp(9)
    for st in (1, 2, 4):
        for s in range(0, 8, 2*st):
            A(f"v_pk_add_f32 {vr(176+2*s,2)}, {vr(176+2*s,2)}, {vr(176+2*(s+st),2)}")
    A("v_cvt_pk_bf16_f32 v52, v176, v177")
    build_A(AOPS, 52, 0); build_A(AOPS+4, 52, 1)
    A("s_nop 1")
    OC = 224
    for q in range(2):
        for cb in range(4):
            c = "0" if q == 0 else vr(OC+4*cb, 4)
            A(f"v_mfma_f32_16x16x32_bf16 {vr(OC+4*cb,4)}, {vr(AOPS+4*q,4)}, {vr(WO+(4*q+cb)*4,4)}, {c}")
    A(f"s_lshl_b32 s{tA}, s{sI}, 12")
    dtile_addr(50, 51, 11, tA)
    A("s_nop 6")
    for cb in range(4):
        A(f"ds_write_b128 v50, {vr(OC+4*cb,4)} offset:{OPP_L+cb*512}")
    gsync(C_OPP)
    ldone = e.label("L_sum5d")
    A("v_subrev_u32 v53, 256, v0")
    A("v_cmp_gt_u32 vcc, 224, v53")
    A(f"s_and_saveexec_b64 s[{sEX}:{sEX+1}], vcc")
    A(f"s_cbranch_execz {ldone}")
    A("v_cmp_le_u32 vcc, 112, v53")
    A("s_nop 1")
    A("v_cndmask_b32 v50, 0, 1, vcc")
    A("v_mul_u32_u24 v51, 112, v50")
    A("v_sub_u32 v51, v53, v51")
    A("v_lshlrev_b32 v52, 11, v50")
    A("v_lshl_add_u32 v52, v51, 4, v52")
    for w2 in range(4):
        A(f"ds_read_b128 {vr(160+4*w2,4)}, v52 offset:{OPP_L+w2*4096}")
    A("s_waitcnt lgkmcnt(0)")
    tree_sum4(160, 4)
    A("v_lshrrev_b32 v52, 2, v53")
    A("v_lshlrev_b32 v52, 13, v52")
    A("v_and_b32 v51, 3, v53")
    A("v_lshl_add_u32 v52, v51, 4, v52")
    A(f"s_mul_i32 s{tA}, s{sP}, {56*8192}")
    A(f"s_lshl_b32 s{tB}, s{sU}, 6")
    A(f"s_add_u32 s{tA}, s{tA}, s{tB}")
    A(f"s_add_u32 s{tA}, s{tA}, {OUTB_OFF}")
    A(f"buffer_store_dwordx4 v[160:163], v52, {srd(SWS)}, s{tA} offen sc1")
    A(f"{ldone}:")
    A(f"s_mov_b64 exec, s[{sEX}:{sEX+1}]")
    lx = e.label("L_x")
    A(f"s_cmp_lg_u32 s{sI}, 0")
    A(f"s_cbranch_scc1 {lx}")
    signal(C_OPP)
    A(f"{lx}:")
    stamp(10)
    A("L_fin:")
    stamp(11)
    if stamps:
        A(f"s_lshl_b32 s{tA}, s2, 3")
        A(f"s_add_u32 s{tA}, s{tA}, s{sW}")
        A(f"s_lshl_b32 s{tA}, s{tA}, 6")
        A(f"s_add_u32 s{tA}, s{tA}, {STAMP_OFF}")
        A("s_waitcnt lgkmcnt(0)")
        for i in range(3): A(f"ds_read_b128 {vr(32+4*i,4)}, v{vSTA} offset:{16*i}")
        A("s_waitcnt lgkmcnt(0)")
        A(f"v_mov_b32 v32, s{sST0}")
        A("v_mov_b32 v44, 0")
        A("s_mov_b64 exec, 1")
        for i in range(3):
            A(f"buffer_store_dwordx4 {vr(32+4*i,4)}, v44, {srd(SWS)}, s{tA} offen offset:{16*i}")
        A("s_mov_b64 exec, -1")
        if dbgid >= 0:
            A(f"s_cmp_lg_u32 s2, {dbgid}")
            A("s_cbranch_scc1 L_end")
            A(f"s_cmp_lg_u32 s{sI}, 0")
            A("s_cbranch_scc1 L_end")
            A("s_load_dwordx2 s[40:41], s[0:1], 104")
            A("s_mov_b32 s42, 256")
            A("s_mov_b32 s43, 0x00020000")
            A("s_waitcnt lgkmcnt(0)")
            lg = e.label("L_dg1")
            A(f"s_cmp_ge_u32 s{sW}, 4")
            A(f"s_cbranch_scc1 {lg}")
            for k, idx in enumerate((2, 3, 5, 4, 9, 10, 11, 7)):
                A(f"v_sub_u32 v{48+k}, v{32+idx}, v32")
            A("s_mov_b64 exec, 1")
            A("buffer_store_dwordx4 v[48:51], v44, s[40:43], 0 offen")
            A("buffer_store_dwordx4 v[52:55], v44, s[40:43], 0 offen offset:16")
            A("s_branch L_end")
            A(f"{lg}:")
            for k, idx in enumerate((2, 1, 4, 6, 7, 8, 9, 10)):
                A(f"v_sub_u32 v{48+k}, v{32+idx}, v32")
            A("s_mov_b64 exec, 1")
            A("buffer_store_dwordx4 v[48:51], v44, s[40:43], 0 offen offset:32")
            A("buffer_store_dwordx4 v[52:55], v44, s[40:43], 0 offen offset:48")
    A("L_end:")
    A("L_codeend:")
    return e.text()

if __name__ == "__main__":
    import argparse
    ap = argparse.ArgumentParser()
    ap.add_argument("-o", default="k8.s")
    ap.add_argument("--stamps", action="store_true")
    ap.add_argument("--nt", action="store_true")
    ap.add_argument("--f2_sleep", type=int, default=2)
    ap.add_argument("--st_sleep", type=int, default=2)
    ap.add_argument("--dbgid", type=int, default=-1)
    ap.add_argument("--wpre", type=int, default=24)
    ap.add_argument("--cpf", type=int, default=0)
    a = ap.parse_args()
    body = gen(stamps=a.stamps, nt=a.nt, f2_sleep=a.f2_sleep, st_sleep=a.st_sleep, dbgid=a.dbgid, wpre=a.wpre, cpf=a.cpf)
    open(a.o, "w").write(single(body, 256, 512, 163840, 256, 102, 256))
```

```python
import sys
from asmlib import *

class E:
    def __init__(s):
        s.l = []; s.lab = 0
    def __call__(s, t): s.l.append(t)
    def label(s, p="L"):
        s.lab += 1
        return f"{p}_{s.lab}"
    def text(s): return "\n".join(s.l)

QA_OFF = 0
QVB_OFF = 256 << 10
FL2_OFF = 384 << 10
FL3_OFF = 400 << 10
EPOCH_OFF = 512 << 10
ST_OFF = 576 << 10
INBOX_OFF = 1 << 20
IB_STRIDE = 40960
CTX_REL = 32768
F2_REL = 34816
STP_REL = 36864
OUTB_OFF = 20 << 20
STAMP_OFF = 32 << 20

R1 = 131072
SP_L = R1
QV_L = R1 + 16384
G1S = R1 + 17408
AL_L = G1S
OP_L = G1S + 1024
QP_L = G1S + 1024
CP_L = G1S + 5120
CNT_L = R1 + 30720
STL = CNT_L + 256
OPP_L = 0
C_QP, C_QV, C_SP, C_POIS, C_OP, C_CP, C_OPP, C_G0DONE, C_QAACK, C_F3 = range(10)

sW, sP, sH, sJ, sB, sKB, sU, sTAG = 3, 4, 5, 6, 7, 8, 9, 11
SWS = 12
tA, tB, sG, sIB, sOB, sH5, sEX, sTO, sA1, sA2, sI, sM, sST, sST0, sX1, sTP = 16, 17, 18, 19, 20, 21, 22, 24, 25, 26, 27, 28, 30, 32, 33, 34
SX, SCKV, SWQ, SWUK, SWUV, SWO, SOUT = 36, 40, 44, 48, 52, 56, 60
PB = 36
def srd(r): return f"s[{r}:{r+3}]"
vL, vN, vK = 1, 2, 3
vSEL = 4
vL16, vN16, vSTA = 12, 14, 15
def vr(a, n): return f"v[{a}:{a+n-1}]"

def gen(stamps=False, timeout=100000, nt=False, f2_sleep=2, st_sleep=2, dbgid=-1, wpre=0, cpf=0, cx_delay=0, ob_delay=0, cx_sleep=0, ob_sleep=0, qv_sleep=1, swapb=1, s1x=0, rowst=1, prew=0, qtag=1):
    e = E(); A = e
    NT = " nt" if nt else ""
    def stamp(idx):
        if not stamps: return
        A(f"s_memrealtime s[{sST}:{sST+1}]")
        A("s_waitcnt lgkmcnt(0)")
        if idx == 0:
            A(f"s_mov_b32 s{sST0}, s{sST}")
        else:
            A(f"v_mov_b32 v29, s{sST}")
            A("s_mov_b64 exec, 1")
            A(f"ds_write_b32 v{vSTA}, v29 offset:{4*idx}")
            A("s_mov_b64 exec, -1")
    def build_A(dst, xreg, tp):
        for p in range(4):
            A(f"v_perm_b32 v{dst+p}, v{xreg}, v{xreg}, v{vSEL+4*tp+p}")
    def tree_sum4(base, n):
        step = 1
        while step < n:
            for q in range(0, n, 2*step):
                if q + step >= n: continue
                a, b2 = base + 4*q, base + 4*(q+step)
                A(f"v_pk_add_f32 {vr(a,2)}, {vr(a,2)}, {vr(b2,2)}")
                A(f"v_pk_add_f32 {vr(a+2,2)}, {vr(a+2,2)}, {vr(b2+2,2)}")
            step *= 2
    def poll(name, check, reissue, sleep=0):
        lp = e.label("L_" + name); lpd = e.label("L_" + name + "d")
        A(f"s_mov_b32 s{sTO}, {timeout}")
        A(f"{lp}:")
        check()
        A(f"s_cbranch_scc1 {lpd}")
        A(f"s_sub_u32 s{sTO}, s{sTO}, 1")
        A(f"s_cmp_eq_u32 s{sTO}, 0")
        A(f"s_cbranch_scc1 {lpd}")
        if sleep: A(f"s_sleep {sleep}")
        reissue()
        A("s_waitcnt vmcnt(0)")
        A(f"s_branch {lp}")
        A(f"{lpd}:")
    def spoll(name, soff, nblk, base, tagregs, sleep=0):
        lp = e.label("L_" + name); lpd = e.label("L_" + name + "d")
        A(f"s_mov_b32 s{sTO}, {timeout}")
        A(f"{lp}:")
        for k in range(nblk):
            A(f"s_load_dwordx16 s[{base+16*k}:{base+16*k+15}], s[{SWS}:{SWS+1}], s{soff} offset:{64*k} glc")
        A("s_waitcnt lgkmcnt(0)")
        if tagregs == "all":
            n = 16 * nblk
            A(f"s_xor_b64 s[{sM}:{sM+1}], s[{base}:{base+1}], s[{sTP}:{sTP+1}]")
            for k in range(2, n, 2):
                A(f"s_xor_b64 s[{sEX}:{sEX+1}], s[{base+k}:{base+k+1}], s[{sTP}:{sTP+1}]")
                A(f"s_or_b64 s[{sM}:{sM+1}], s[{sM}:{sM+1}], s[{sEX}:{sEX+1}]")
            A(f"s_cmp_eq_u64 s[{sM}:{sM+1}], 0")
        else:
            A(f"s_xor_b32 s{sM}, s{tagregs[0]}, s{sTAG}")
            for r in tagregs[1:]:
                A(f"s_xor_b32 s{sM+1}, s{r}, s{sTAG}")
                A(f"s_or_b32 s{sM}, s{sM}, s{sM+1}")
            A(f"s_cmp_eq_u32 s{sM}, 0")
        A(f"s_cbranch_scc1 {lpd}")
        A(f"s_sub_u32 s{sTO}, s{sTO}, 1")
        A(f"s_cmp_eq_u32 s{sTO}, 0")
        A(f"s_cbranch_scc1 {lpd}")
        if sleep: A(f"s_sleep {sleep}")
        A(f"s_branch {lp}")
        A(f"{lpd}:")
    def poison_check(regs, tmp):
        def f():
            r = list(regs)
            A(f"v_max3_u32 v{tmp}, v{r[0]}, v{r[1]}, v{r[2]}"); r = r[3:]
            while len(r) >= 2:
                A(f"v_max3_u32 v{tmp}, v{tmp}, v{r[0]}, v{r[1]}"); r = r[2:]
            if r:
                A(f"v_max_u32 v{tmp}, v{tmp}, v{r[0]}")
            A(f"v_cmp_eq_u32 vcc, -1, v{tmp}")
            A("s_nop 1")
            A("s_cmp_eq_u64 vcc, 0")
        return f
    def signal(c, areg=30):
        A("s_mov_b64 exec, 1")
        A(f"ds_add_u32 v{areg}, v31 offset:{4*c}")
        A("s_mov_b64 exec, -1")
    def arrive(c):
        A("s_waitcnt lgkmcnt(0)")
        signal(c)
    def wait_cnt(c, n, areg=30, sleep=0):
        lp = e.label("L_w"); lpd = e.label("L_wd")
        A(f"s_mov_b32 s{sTO}, {timeout*20}")
        A(f"{lp}:")
        A(f"ds_read_b32 v29, v{areg} offset:{4*c}")
        A("s_waitcnt lgkmcnt(0)")
        A(f"v_readfirstlane_b32 s{tB}, v29")
        A(f"s_sub_u32 s{sTO}, s{sTO}, 1")
        A(f"s_cmp_eq_u32 s{sTO}, 0")
        A(f"s_cbranch_scc1 {lpd}")
        A(f"s_cmp_ge_u32 s{tB}, {n}")
        A(f"s_cbranch_scc1 {lpd}")
        if sleep: A(f"s_sleep {sleep}")
        A(f"s_branch {lp}")
        A(f"{lpd}:")
    def gsync(c):
        arrive(c); wait_cnt(c, 4)
    def selectors():
        A(f"v_and_b32 v17, 1, v{vN}")
        A(f"v_bfe_u32 v18, v{vN}, 1, 2")
        A("v_cmp_eq_u32 vcc, 1, v17")
        for tp in range(2):
            lo = 0x0C0C0000 | ((2*tp+1) << 8) | (2*tp)
            hi = ((2*tp+1) << 24) | ((2*tp) << 16) | 0x0C0C
            A(f"v_mov_b32 v24, 0x{lo:08x}")
            A(f"v_mov_b32 v25, 0x{hi:08x}")
            A(f"v_cndmask_b32 v{26+tp}, v24, v25, vcc")
        A(f"v_mov_b32 v24, 0x0c0c0c0c")
        for p in range(4):
            A(f"v_cmp_eq_u32 vcc, {p}, v18")
            A("s_nop 1")
            for tp in range(2):
                A(f"v_cndmask_b32 v{vSEL+4*tp+p}, v24, v{26+tp}, vcc")
    def mk_tag():
        A("s_waitcnt lgkmcnt(0)")
        A(f"s_mul_i32 s{sTAG}, s{sTAG}, 0x9E3779B1")
        A(f"s_add_u32 s{sTAG}, s{sTAG}, 0x7F4A7C15")
        A(f"s_mov_b32 s{sTP}, s{sTAG}")
        A(f"s_mov_b32 s{sTP+1}, s{sTAG}")
    def dtile_addr(dst, tmp, bshift, sbase):
        A(f"v_lshrrev_b32 v{dst}, 1, v{vK}")
        A(f"v_lshlrev_b32 v{dst}, {bshift}, v{dst}")
        A(f"v_lshl_add_u32 v{dst}, v{vN}, 5, v{dst}")
        A(f"v_and_b32 v{tmp}, 1, v{vK}")
        A(f"v_lshl_add_u32 v{dst}, v{tmp}, 4, v{dst}")
        A(f"v_add_u32 v{dst}, s{sbase}, v{dst}")

    A("s_cmp_ge_u32 s2, 256")
    A("s_cbranch_scc1 L_end")
    stamp(0)
    A(f"s_and_b32 s{tA}, s2, 7")
    A(f"s_lshr_b32 s{tB}, s2, 6")
    A(f"s_lshl_b32 s{sG}, s{tA}, 2")
    A(f"s_add_u32 s{sG}, s{sG}, s{tB}")
    A(f"s_lshr_b32 s{sP}, s{sG}, 4")
    A(f"s_mul_i32 s10, s{sP}, 48")
    A(f"s_load_dwordx2 s[{SWS}:{SWS+1}], s[0:1], 112")
    for r, off in ((SX, 0), (SWQ, 16), (SWUK, 24), (SCKV, 8), (SWUV, 32), (SWO, 40)):
        A(f"s_load_dwordx2 s[{r}:{r+1}], s[0:1], s10 offset:{off}")
    A(f"s_and_b32 s{sH}, s{sG}, 15")
    A(f"s_lshr_b32 s{tA}, s2, 3")
    A(f"s_and_b32 s{sJ}, s{tA}, 7")
    A(f"s_lshl_b32 s{sU}, s{sH}, 3")
    A(f"s_add_u32 s{sU}, s{sU}, s{sJ}")
    A(f"s_lshr_b32 s{sB}, s{sU}, 6")
    A(f"s_and_b32 s{sKB}, s{sU}, 63")
    A(f"v_and_b32 v{vL}, 63, v0")
    A(f"v_and_b32 v{vN}, 15, v0")
    A(f"v_bfe_u32 v{vK}, v0, 4, 2")
    A(f"v_lshrrev_b32 v13, 6, v0")
    A("s_nop 0")
    A(f"v_readfirstlane_b32 s{sW}, v13")
    for r, sz in ((SX, 1792), (SCKV, 16777216), (SWQ, 3670016), (SWUK, 8388608), (SWUV, 8388608), (SWO, 3670016), (SWS, 268435456)):
        A(f"s_mov_b32 s{r+2}, {sz}")
        A(f"s_mov_b32 s{r+3}, 0x00020000")
    A(f"s_and_b32 s{sI}, s{sW}, 3")
    A(f"v_lshlrev_b32 v{vL16}, 4, v{vL}")
    A(f"v_lshlrev_b32 v{vN16}, 4, v{vN}")
    A(f"v_mov_b32 v30, {CNT_L}")
    A("v_mov_b32 v31, 1")
    A(f"v_lshlrev_b32 v{vSTA}, 6, v13")
    A(f"v_add_u32 v{vSTA}, {STL}, v{vSTA}")
    A(f"v_lshlrev_b32 v13, 2, v{vL}")
    A(f"v_add_u32 v13, {CNT_L}, v13")
    A("v_mov_b32 v29, 0")
    A("ds_write_b32 v13, v29")
    A(f"s_lshl_b32 s{sH5}, s{sH}, 9")
    A(f"s_lshl_b32 s{sIB}, s{sP}, 7")
    A(f"s_add_u32 s{sIB}, s{sIB}, s{sU}")
    A(f"s_mul_i32 s{sIB}, s{sIB}, {IB_STRIDE}")
    A(f"s_add_u32 s{sIB}, s{sIB}, {INBOX_OFF}")
    A(f"s_mul_i32 s{sOB}, s{sP}, 56")
    A(f"s_add_u32 s{sOB}, s{sOB}, s{sU}")
    A(f"s_lshl_b32 s{sOB}, s{sOB}, 13")
    A(f"s_add_u32 s{sOB}, s{sOB}, {OUTB_OFF}")
    A(f"s_lshl_b32 s{tA}, s{sI}, 2")
    A(f"v_add_u32 v28, s{tA}, v30")
    A("s_waitcnt lgkmcnt(0)")
    A(f"s_lshl_b32 s{tA}, s{sP}, 8")
    A(f"s_add_u32 s{tA}, s{tA}, {EPOCH_OFF}")
    A(f"s_load_dword s{sTAG}, s[{SWS}:{SWS+1}], s{tA}")
    A(f"s_cmp_ge_u32 s{sW}, 4")
    A("s_cbranch_scc1 L_G1")

    A("s_setprio 2")
    if cpf:
        lcp = e.label("L_nocpf")
        A(f"s_cmp_ge_u32 s2, {8*cpf}")
        A(f"s_cbranch_scc1 {lcp}")
        A("s_getpc_b64 s[64:65]")
        A("L_pcref:")
        A("s_sub_u32 s64, s64, L_pcref-" + KN + "_kernel")
        A("s_subb_u32 s65, s65, 0")
        A("s_mov_b32 s66, L_codeend-" + KN + "_kernel")
        A("s_mov_b32 s67, 0x00020000")
        A(f"s_lshl_b32 s{tA}, s{sI}, 12")
        for k in range(4):
            A(f"buffer_load_dwordx4 v[{240+4*k}:{243+4*k}], v{vL16}, s[64:67], s{tA} offen offset:{k*1024}")
        A(f"{lcp}:")
    WUK = 80; ACC = 176
    A(f"v_lshlrev_b32 v16, 13, v{vN}")
    A(f"v_lshl_add_u32 v16, v{vK}, 4, v16")
    A(f"s_lshl_b32 s{tA}, s{sJ}, 2")
    A(f"s_add_u32 s{tA}, s{tA}, s{sI}")
    A(f"s_lshl_b32 s{tA}, s{tA}, 18")
    A(f"s_add_u32 s{tA}, s{tA}, s{sH5}")
    A("s_barrier")
    for tl in range(2):
        if tl: A(f"s_add_u32 s{tA}, s{tA}, {16*8192}")
        for ks in range(8):
            A(f"buffer_load_dwordx4 {vr(WUK+(tl*8+ks)*4,4)}, v16, {srd(SWUK)}, s{tA} offen offset:{ks*64}{NT}")
    A("s_setprio 3")
    mk_tag()
    A(f"s_lshl_b32 s{sA1}, s{sG}, 11")
    A(f"s_lshl_b32 s{tA}, s{sI}, 9")
    A(f"s_add_u32 s{sA1}, s{sA1}, s{tA}")
    A(f"s_add_u32 s{sA1}, s{sA1}, {QVB_OFF}")
    for p in range(2):
        if p: A(f"s_add_u32 s{sA1}, s{sA1}, 256")
        spoll(f"qv{p}", sA1, 4, PB, [PB + 2*k + 1 for k in range(32)], sleep=qv_sleep)
        for k in range(32):
            A(f"v_writelane_b32 v32, s{PB+2*k}, {32*p+k}")
    A("v_lshlrev_b32 v17, 1, v0")
    A(f"v_add_u32 v17, {QV_L}, v17")
    A("ds_write_b16 v17, v32")
    A("ds_write_b16_d16_hi v17, v32 offset:512")
    gsync(C_QV)
    A(f"v_and_b32 v17, 1, v{vN}")
    A("v_lshlrev_b32 v17, 9, v17")
    A(f"v_lshl_add_u32 v17, v{vK}, 4, v17")
    A(f"v_add_u32 v17, {QV_L}, v17")
    for ks in range(8):
        A(f"ds_read_b128 {vr(32+4*ks,4)}, v17 offset:{ks*64}")
    A("s_waitcnt lgkmcnt(0)")
    stamp(2)
    A("s_waitcnt vmcnt(0)")
    for ks in range(8):
        for tl in range(2):
            c = "0" if ks == 0 else vr(ACC+4*tl, 4)
            A(f"v_mfma_f32_16x16x32_bf16 {vr(ACC+4*tl,4)}, {vr(WUK+(tl*8+ks)*4,4)}, {vr(32+4*ks,4)}, {c}")
    if not qtag:
        A(f"v_lshlrev_b32 v17, 15, v{vN}")
        A(f"v_lshl_add_u32 v17, v{vK}, 3, v17")
        A(f"s_lshl_b32 s{tA}, s{sP}, 16")
        A(f"s_lshl_b32 s{tB}, s{sH}, 11")
        A(f"s_add_u32 s{tA}, s{tA}, s{tB}")
        A(f"s_lshl_b32 s{tB}, s{sJ}, 8")
        A(f"s_add_u32 s{tA}, s{tA}, s{tB}")
        A(f"s_lshl_b32 s{tB}, s{sI}, 6")
        A(f"s_add_u32 s{tA}, s{tA}, s{tB}")
        A("v_mov_b32 v32, 0x3db8aa3b")
        A("s_nop 1")
        for r in range(8):
            A(f"v_mul_f32 v{ACC+r}, v32, v{ACC+r}")
        for tl in range(2):
            A(f"v_cvt_pk_bf16_f32 v{ACC+8+2*tl}, v{ACC+4*tl}, v{ACC+4*tl+1}")
            A(f"v_cvt_pk_bf16_f32 v{ACC+9+2*tl}, v{ACC+4*tl+2}, v{ACC+4*tl+3}")
        A(f"v_cmp_gt_u32 vcc, 2, v{vN}")
        A(f"s_and_saveexec_b64 s[{sEX}:{sEX+1}], vcc")
        for tl in range(2):
            A(f"buffer_store_dwordx2 {vr(ACC+8+2*tl,2)}, v17, {srd(SWS)}, s{tA} offen offset:{32*tl} sc1")
        A(f"s_mov_b64 exec, s[{sEX}:{sEX+1}]")
    else:
        wait_cnt(C_POIS, 4)
        A(f"v_lshlrev_b32 v17, 16, v{vN}")
        A(f"v_lshl_add_u32 v17, v{vK}, 4, v17")
        A(f"s_lshl_b32 s{tA}, s{sP}, 17")
        A(f"s_lshl_b32 s{tB}, s{sH}, 12")
        A(f"s_add_u32 s{tA}, s{tA}, s{tB}")
        A(f"s_lshl_b32 s{tB}, s{sJ}, 9")
        A(f"s_add_u32 s{tA}, s{tA}, s{tB}")
        A(f"s_lshl_b32 s{tB}, s{sI}, 7")
        A(f"s_add_u32 s{tA}, s{tA}, s{tB}")
        A("v_mov_b32 v32, 0x3db8aa3b")
        A("s_nop 1")
        for r in range(8):
            A(f"v_mul_f32 v{ACC+r}, v32, v{ACC+r}")
        for tl in range(2):
            A(f"v_cvt_pk_bf16_f32 v{ACC+8+4*tl}, v{ACC+4*tl}, v{ACC+4*tl+1}")
            A(f"v_mov_b32 v{ACC+9+4*tl}, s{sTAG}")
            A(f"v_cvt_pk_bf16_f32 v{ACC+10+4*tl}, v{ACC+4*tl+2}, v{ACC+4*tl+3}")
            A(f"v_mov_b32 v{ACC+11+4*tl}, s{sTAG}")
        A(f"v_cmp_gt_u32 vcc, 2, v{vN}")
        A(f"s_and_saveexec_b64 s[{sEX}:{sEX+1}], vcc")
        for tl in range(2):
            A(f"buffer_store_dwordx4 {vr(ACC+8+4*tl,4)}, v17, {srd(SWS)}, s{tA} offen offset:{64*tl} sc1")
        A(f"s_mov_b64 exec, s[{sEX}:{sEX+1}]")
    QAr = 32; CA = 64; SA = 192; AD = 4; TD = 20
    def _prep():
        A(f"s_lshl_b32 s{sX1}, s{sI}, 15")
        for ks in range(4):
            A(f"v_add_u32 v{AD+ks}, {4*ks}, v{vK}")
            A(f"v_xor_b32 v{AD+ks}, v{AD+ks}, v{vN}")
            A(f"v_lshlrev_b32 v{AD+ks}, 4, v{AD+ks}")
            A(f"v_lshl_add_u32 v{AD+ks}, v{vN}, 8, v{AD+ks}")
            A(f"v_add_u32 v{AD+ks}, s{sX1}, v{AD+ks}")
        A(f"v_lshrrev_b32 v{AD+4}, 2, v{vN}")
        A(f"v_and_b32 v{AD+5}, 3, v{vN}")
        A(f"v_lshl_add_u32 v{AD+6}, v{vK}, 2, v{AD+4}")
        A(f"v_lshlrev_b32 v{AD+6}, 8, v{AD+6}")
        A(f"v_add_u32 v{AD+6}, s{sX1}, v{AD+6}")
        A(f"v_xor_b32 v{AD+7}, v{AD+5}, v{vK}")
        A(f"v_lshl_add_u32 v{AD+6}, v{AD+7}, 6, v{AD+6}")
        A(f"v_and_b32 v{AD+5}, 1, v{AD+5}")
        for t in range(8):
            tau, hb = t >> 1, t & 1
            A(f"v_xor_b32 v{AD+7}, {tau}, v{AD+4}")
            A(f"v_lshl_add_u32 v{TD+t}, v{AD+7}, 4, v{AD+6}")
            A(f"v_xor_b32 v{AD+7}, {hb}, v{AD+5}")
            A(f"v_lshl_add_u32 v{TD+t}, v{AD+7}, 3, v{TD+t}")

    def _push():
        if not qtag:
            wait_cnt(C_POIS, 4)
            A("s_waitcnt vmcnt(0)")
        A("s_mov_b64 exec, 1")
        A(f"ds_add_rtn_u32 v29, v30, v31 offset:{4*C_QAACK}")
        A("s_waitcnt lgkmcnt(0)")
        A(f"v_readfirstlane_b32 s{tB}, v29")
        lnf = e.label("L_nof2")
        A(f"s_cmp_lg_u32 s{tB}, 3")
        A(f"s_cbranch_scc1 {lnf}")
        A("s_mov_b64 exec, -1")
        A(f"s_mul_i32 s{tA}, s{sP}, {128*IB_STRIDE}")
        A(f"s_lshl_b32 s{tB}, s{sJ}, 6")
        A(f"s_add_u32 s{tA}, s{tA}, s{tB}")
        A(f"s_lshl_b32 s{tB}, s{sH}, 2")
        A(f"s_add_u32 s{tA}, s{tA}, s{tB}")
        A(f"s_add_u32 s{tA}, s{tA}, {INBOX_OFF + F2_REL}")
        A(f"s_mov_b32 s{tB}, {IB_STRIDE}")
        A(f"v_mul_lo_u32 v17, v{vL}, s{tB}")
        A(f"v_mov_b32 v29, s{sTAG}")
        A(f"buffer_store_dword v29, v17, {srd(SWS)}, s{tA} offen sc1")
        A(f"s_add_u32 s{tA}, s{tA}, {64*IB_STRIDE}")
        A(f"buffer_store_dword v29, v17, {srd(SWS)}, s{tA} offen sc1")
        A(f"{lnf}:")
        A("s_mov_b64 exec, -1")

    if qtag:
        _push(); _prep()
    else:
        _prep(); _push()
    stamp(3)
    A(f"s_lshl_b32 s{tA}, s{sI}, 7")
    A(f"s_add_u32 s{sA1}, s{sIB}, s{tA}")
    A(f"s_add_u32 s{sA1}, s{sA1}, {F2_REL}")
    qs = 1 if qtag else 0
    A(f"v_lshlrev_b32 v18, {11+qs}, v{vN}")
    A(f"v_lshl_add_u32 v18, v{vK}, {4+qs}, v18")
    A(f"s_lshl_b32 s{sA2}, s{sP}, 1")
    A(f"s_add_u32 s{sA2}, s{sA2}, s{sB}")
    A(f"s_lshl_b32 s{sA2}, s{sA2}, {15+qs}")
    A(f"s_lshl_b32 s{tA}, s{sI}, {9+qs}")
    A(f"s_add_u32 s{sA2}, s{sA2}, s{tA}")
    spoll("f2", sA1, 2, PB, "all", sleep=f2_sleep)
    RAW = 192
    def qa_loads():
        if qtag:
            for k8 in range(8):
                for hf in range(2):
                    A(f"buffer_load_dwordx4 {vr(RAW+8*k8+4*hf,4)}, v18, {srd(SWS)}, s{sA2} offen offset:{k8*128+16*hf} sc1")
        else:
            for k8 in range(8):
                A(f"buffer_load_dwordx4 {vr(QAr+4*k8,4)}, v18, {srd(SWS)}, s{sA2} offen offset:{k8*64} sc1")
    qa_loads()
    stamp(5)
    if qtag:
        def qa_check():
            tg = [RAW + 2*k + 1 for k in range(32)]
            for op, dst in (("v_max3_u32", 16), ("v_min3_u32", 17)):
                A(f"{op} v{dst}, v{tg[0]}, v{tg[1]}, v{tg[2]}")
                for k in range(3, 31, 2):
                    A(f"{op} v{dst}, v{dst}, v{tg[k]}, v{tg[k+1]}")
                A(f"{op} v{dst}, v{dst}, v{tg[31]}, v{tg[31]}")
            A(f"v_xor_b32 v16, s{sTAG}, v16")
            A(f"v_xor_b32 v17, s{sTAG}, v17")
            A("v_or_b32 v16, v16, v17")
            A("v_cmp_ne_u32 vcc, 0, v16")
            A("s_nop 1")
            A("s_cmp_eq_u64 vcc, 0")
        A("s_waitcnt vmcnt(0)")
        poll("qa", qa_check, qa_loads)
        for k in range(32):
            A(f"v_mov_b32 v{QAr+k}, v{RAW+2*k}")
    wait_cnt(16, 1, areg=28, sleep=1)
    stamp(4)
    for cr in range(2):
        for kt in range(4):
            for ks in range(4):
                A(f"ds_read_b128 {vr(CA+cr*64+(kt*4+ks)*4,4)}, v{AD+ks} offset:{cr*16384+kt*4096}")
    A("s_waitcnt vmcnt(0) lgkmcnt(0)")
    for cr in range(2):
        for ks in range(4):
            for kt in range(4):
                c = "0" if (cr == 0 and ks == 0) else vr(SA+4*kt, 4)
                A(f"v_mfma_f32_16x16x32_bf16 {vr(SA+4*kt,4)}, {vr(CA+cr*64+(kt*4+ks)*4,4)}, {vr(QAr+(cr*4+ks)*4,4)}, {c}")
    A(f"s_lshl_b32 s{tA}, s{sI}, 12")
    A(f"s_add_u32 s{tA}, s{tA}, {SP_L}")
    A(f"v_add_u32 v17, s{tA}, v{vL16}")
    A("s_nop 7")
    for kt in range(4):
        A(f"ds_write_b128 v17, {vr(SA+4*kt,4)} offset:{kt*1024}")
    arrive(C_SP)
    stamp(7)
    if rowst:
        for tau in range(4):
            A(f"v_add_u32 v{52+tau}, {4*tau}, v{vK}")
            A(f"v_xor_b32 v{52+tau}, v{52+tau}, v{vN}")
            A(f"v_lshlrev_b32 v{52+tau}, 4, v{52+tau}")
            A(f"v_lshl_add_u32 v{52+tau}, v{vN}, 8, v{52+tau}")
            A(f"v_add_u32 v{52+tau}, s{sX1}, v{52+tau}")
        A(f"v_xor_b32 v60, v{vN}, v{vK}")
        for r in range(4):
            A(f"v_xor_b32 v{56+r}, {4*r}, v60")
            A(f"v_lshlrev_b32 v{56+r}, 4, v{56+r}")
            A(f"v_lshl_add_u32 v{56+r}, v{vK}, 8, v{56+r}")
            A(f"v_add_u32 v{56+r}, s{sX1}, v{56+r}")
    CT = 64
    for cr in range(2):
        for t in range(8):
            for ks2 in range(2):
                for u in range(2):
                    A(f"ds_read_b64_tr_b16 {vr(CT+cr*64+(t*2+ks2)*4+2*u,2)}, v{TD+t} offset:{cr*16384+(32*ks2+16*u)*256}")
    wait_cnt(C_SP, 4)
    stamp(8)
    A(f"v_add_u32 v17, {SP_L}, v{vL16}")
    for w2 in range(4):
        for kt in range(4):
            A(f"ds_read_b128 {vr(192+w2*16+kt*4,4)}, v17 offset:{w2*4096+kt*1024}")
    A("s_waitcnt lgkmcnt(0)")
    for r in range(0, 16, 2):
        A(f"v_pk_add_f32 {vr(192+r,2)}, {vr(192+r,2)}, {vr(208+r,2)}")
        A(f"v_pk_add_f32 {vr(224+r,2)}, {vr(224+r,2)}, {vr(240+r,2)}")
    for r in range(0, 16, 2):
        A(f"v_pk_add_f32 {vr(192+r,2)}, {vr(192+r,2)}, {vr(224+r,2)}")
    A(f"v_max3_f32 v48, v{SA}, v{SA+1}, v{SA+2}")
    for i in range(3, 15, 2):
        A(f"v_max3_f32 v48, v48, v{SA+i}, v{SA+i+1}")
    A(f"v_max_f32 v48, v48, v{SA+15}")
    A("v_mov_b32 v49, v48"); A("s_nop 1"); A("v_permlane32_swap_b32 v48, v49"); A("v_max_f32 v48, v48, v49")
    A("v_mov_b32 v49, v48"); A("s_nop 1"); A("v_permlane16_swap_b32 v48, v49"); A("v_max_f32 v48, v48, v49")
    for i in range(16): A(f"v_sub_f32 v{SA+i}, v{SA+i}, v48")
    for i in range(16): A(f"v_exp_f32 v{SA+i}, v{SA+i}")
    A("s_nop 0")
    for ks2 in range(2):
        for q in range(4):
            s = SA + 8*ks2 + 2*q
            A(f"v_cvt_pk_bf16_f32 v{32+4*ks2+q}, v{s}, v{s+1}")
    A(f"v_add_f32 v49, v{SA}, v{SA+1}")
    for i in range(2, 16): A(f"v_add_f32 v49, v49, v{SA+i}")
    OA = 192
    A("s_nop 1")
    for cr in range(2):
        for t in range(8):
            A(f"v_mfma_f32_16x16x32_bf16 {vr(OA+cr*32+4*t,4)}, {vr(CT+cr*64+(t*2)*4,4)}, v[32:35], 0")
        for t in range(8):
            A(f"v_mfma_f32_16x16x32_bf16 {vr(OA+cr*32+4*t,4)}, {vr(CT+cr*64+(t*2+1)*4,4)}, v[36:39], {vr(OA+cr*32+4*t,4)}")
    signal(C_G0DONE)
    stamp(9)
    A("v_mov_b32 v50, v49"); A("s_nop 1"); A("v_permlane32_swap_b32 v49, v50"); A("v_add_f32 v49, v49, v50")
    A("v_mov_b32 v50, v49"); A("s_nop 1"); A("v_permlane16_swap_b32 v49, v50"); A("v_add_f32 v49, v49, v50")
    A(f"s_mov_b32 s{tA}, {IB_STRIDE*8}")
    A(f"v_mul_lo_u32 v17, v{vN}, s{tA}")
    A(f"v_lshl_add_u32 v18, v{vK}, 4, v17")
    A(f"v_mul_lo_u32 v19, v{vK}, s{tA}")
    A(f"v_add_u32 v19, v19, v{vN16}")
    A(f"s_lshl_b32 s{tA}, s{sP}, 7")
    A(f"s_lshl_b32 s{tB}, s{sI}, 1")
    A(f"s_add_u32 s{tA}, s{tA}, s{tB}")
    A(f"s_mul_i32 s{tA}, s{tA}, {IB_STRIDE}")
    A(f"s_add_u32 s{tA}, s{tA}, {INBOX_OFF}")
    A(f"s_lshl_b32 s{tB}, s{sU}, 8")
    A(f"s_add_u32 s{sA1}, s{tA}, s{tB}")
    if not rowst:
        for cr in range(2):
            if cr:
                A(f"s_add_u32 s{sA1}, s{sA1}, {IB_STRIDE}")
            for tau in range(4):
                d = 64 + cr*16 + 4*tau
                a_, b2 = OA + cr*32 + 8*tau, OA + cr*32 + 8*tau + 4
                A(f"v_cvt_pk_bf16_f32 v{d}, v{a_}, v{a_+1}")
                A(f"v_cvt_pk_bf16_f32 v{d+1}, v{a_+2}, v{a_+3}")
                A(f"v_cvt_pk_bf16_f32 v{d+2}, v{b2}, v{b2+1}")
                A(f"v_cvt_pk_bf16_f32 v{d+3}, v{b2+2}, v{b2+3}")
                A(f"buffer_store_dwordx4 {vr(d,4)}, v18, {srd(SWS)}, s{sA1} offen offset:{tau*64} sc1")
    else:
        for cr in range(2):
            for tau in range(4):
                d = 64 + cr*16 + 4*tau
                a_, b2 = OA + cr*32 + 8*tau, OA + cr*32 + 8*tau + 4
                A(f"v_cvt_pk_bf16_f32 v{d}, v{a_}, v{a_+1}")
                A(f"v_cvt_pk_bf16_f32 v{d+1}, v{a_+2}, v{a_+3}")
                A(f"v_cvt_pk_bf16_f32 v{d+2}, v{b2}, v{b2+1}")
                A(f"v_cvt_pk_bf16_f32 v{d+3}, v{b2+2}, v{b2+3}")
                A(f"ds_write_b128 v{52+tau}, {vr(d,4)} offset:{cr*4096}")
        A("s_waitcnt lgkmcnt(0)")
        for cr in range(2):
            for r in range(4):
                A(f"ds_read_b128 {vr(96+cr*16+4*r,4)}, v{56+r} offset:{cr*4096+r*1024}")
        for cr in range(2):
            for r in range(4):
                A(f"s_add_u32 s{tB}, s{sA1}, {cr*IB_STRIDE + r*32*IB_STRIDE}")
                A(f"s_waitcnt lgkmcnt({7-(cr*4+r)})")
                A(f"buffer_store_dwordx4 {vr(96+cr*16+4*r,4)}, v19, {srd(SWS)}, s{tB} offen sc1")
    stamp(6)
    A(f"s_mov_b32 s{tB}, {IB_STRIDE}")
    A(f"v_mul_lo_u32 v16, v{vK}, s{tB}")
    A("v_add_u32 v17, v17, v16")
    A(f"s_lshl_b32 s{tB}, s{sU}, 4")
    A(f"s_add_u32 s{tA}, s{tA}, s{tB}")
    A(f"s_add_u32 s{tA}, s{tA}, {STP_REL}")
    A(f"v_mov_b32 v50, s{sTAG}")
    A("v_mov_b32 v51, 0")
    A("s_waitcnt vmcnt(0)")
    A("s_mov_b32 exec_hi, 0")
    A(f"buffer_store_dwordx4 v[48:51], v17, {srd(SWS)}, s{tA} offen sc1")
    A("s_mov_b64 exec, -1")
    signal(C_F3)
    stamp(10)
    A("s_branch L_fin")

    A("L_G1:")
    A("s_setprio 3")
    if swapb:
        A(f"s_xor_b32 s{sH}, s{sH}, 1")
        A(f"s_xor_b32 s{sG}, s{sG}, 1")
        A(f"s_xor_b32 s{sU}, s{sU}, 8")
        A(f"s_xor_b32 s{sH5}, s{sH5}, 512")
        A(f"s_lshl_b32 s{sIB}, s{sP}, 7")
        A(f"s_add_u32 s{sIB}, s{sIB}, s{sU}")
        A(f"s_mul_i32 s{sIB}, s{sIB}, {IB_STRIDE}")
        A(f"s_add_u32 s{sIB}, s{sIB}, {INBOX_OFF}")
        A(f"s_mul_i32 s{sOB}, s{sP}, 56")
        A(f"s_add_u32 s{sOB}, s{sOB}, s{sU}")
        A(f"s_lshl_b32 s{sOB}, s{sOB}, 13")
        A(f"s_add_u32 s{sOB}, s{sOB}, {OUTB_OFF}")
    vX = 32; WQ = 48; AOP = 192
    A(f"v_lshrrev_b32 v13, 3, v{vN}")
    A("v_mul_u32_u24 v13, 896, v13")
    A(f"v_mad_u32_u24 v13, v{vK}, 56, v13")
    A(f"s_mul_i32 s{tA}, s{sI}, 224")
    for q in range(3):
        A(f"buffer_load_dwordx4 {vr(vX+4*q,4)}, v13, {srd(SX)}, s{tA} offen offset:{16*q}")
    A(f"buffer_load_dwordx2 {vr(vX+12,2)}, v13, {srd(SX)}, s{tA} offen offset:48")
    A(f"v_lshrrev_b32 v19, 2, v{vN}")
    A(f"v_mad_u32_u24 v19, v{vK}, 28, v19")
    A("v_lshlrev_b32 v19, 13, v19")
    A(f"v_and_b32 v16, 3, v{vN}")
    A("v_lshl_add_u32 v19, v16, 4, v19")
    A(f"s_mul_i32 s{tA}, s{sI}, {112*8192}")
    A(f"s_xor_b32 s{tB}, s{sH5}, {512*s1x}")
    A(f"s_add_u32 s{tA}, s{tA}, s{tB}")
    A(f"s_lshl_b32 s{tB}, s{sJ}, 6")
    A(f"s_add_u32 s{tA}, s{tA}, s{tB}")
    for t in range(7):
        if t > 0: A(f"s_add_u32 s{tA}, s{tA}, {4*8192}")
        A(f"buffer_load_dwordx4 {vr(WQ+4*t,4)}, v19, {srd(SWQ)}, s{tA} offen{NT}")
    A("s_barrier")
    selectors()
    mk_tag()
    A("s_waitcnt vmcnt(6)")
    seq = [(t, a) for t in range(7) for a in range(4)]
    build_A(AOP, vX, 0)
    for n, (t, a) in enumerate(seq):
        cur = AOP + 4*(n & 1)
        if n + 1 < len(seq):
            t2, a2 = seq[n+1]
            build_A(AOP + 4*((n+1) & 1), vX + ((4*t2+a2) >> 1), a2 & 1)
        else:
            A("s_nop 1")
        if a == 0 and t > 0:
            A(f"s_waitcnt vmcnt({6 - t})")
        c = "0" if t == 0 else vr(ACC+4*a, 4)
        A(f"v_mfma_f32_16x16x32_bf16 {vr(ACC+4*a,4)}, {vr(cur,4)}, {vr(WQ+4*t,4)}, {c}")
    A(f"v_lshrrev_b32 v17, 2, v{vN}")
    A("s_nop 7")
    for a in range(1, 4):
        A(f"v_cmp_eq_u32 vcc, {a}, v17")
        A("s_nop 1")
        for r in range(4):
            A(f"v_cndmask_b32 v{ACC+r}, v{ACC+r}, v{ACC+4*a+r}, vcc")
    for rot in (4, 8):
        A("s_nop 1")
        for r in range(4):
            A(f"v_add_f32_dpp v{ACC+r}, v{ACC+r}, v{ACC+r} row_ror:{rot} row_mask:0xf bank_mask:0xf")
    A(f"s_lshl_b32 s{tA}, s{sI}, 8")
    A(f"s_add_u32 s{tA}, s{tA}, {QP_L}")
    dtile_addr(17, 18, 7, tA)
    A(f"v_cmp_gt_u32 vcc, 4, v{vN}")
    A(f"s_and_saveexec_b64 s[{sEX}:{sEX+1}], vcc")
    A(f"ds_write_b128 v17, {vr(ACC,4)}")
    A(f"s_mov_b64 exec, s[{sEX}:{sEX+1}]")
    arrive(C_QP)
    lq0 = e.label("L_q0")
    A(f"s_cmp_lg_u32 s{sI}, 0")
    A(f"s_cbranch_scc1 {lq0}")
    wait_cnt(C_QP, 4)
    A(f"v_lshlrev_b32 v17, 2, v{vL}")
    A(f"v_add_u32 v17, {QP_L}, v17")
    for w2 in range(4):
        A(f"ds_read_b32 v{32+w2}, v17 offset:{w2*256}")
    A("s_waitcnt lgkmcnt(0)")
    A("v_add_f32 v32, v32, v33"); A("v_add_f32 v34, v34, v35"); A("v_add_f32 v32, v32, v34")
    A("v_mov_b32 v33, v32"); A("s_nop 1")
    A("v_permlane32_swap_b32 v32, v33")
    A("s_nop 0")
    A("v_cvt_pk_bf16_f32 v34, v32, v33")
    A(f"v_mov_b32 v35, s{sTAG}")
    A(f"v_lshlrev_b32 v17, 3, v{vL}")
    A(f"s_xor_b32 s{tA}, s{sG}, {s1x}")
    A(f"s_lshl_b32 s{tA}, s{tA}, 11")
    A(f"s_lshl_b32 s{tB}, s{sJ}, 8")
    A(f"s_add_u32 s{tA}, s{tA}, s{tB}")
    A(f"s_add_u32 s{tA}, s{tA}, {QVB_OFF}")
    A("s_mov_b32 exec_hi, 0")
    A(f"buffer_store_dwordx2 v[34:35], v17, {srd(SWS)}, s{tA} offen sc1")
    A("s_mov_b64 exec, -1")
    A(f"{lq0}:")
    stamp(2)
    A("s_setprio 0")
    for i in range(4): A(f"v_mov_b32 v{40+i}, -1")
    if prew:
        A(f"s_lshl_b32 s{tA}, s{sI}, 13")
        A(f"s_add_u32 s{tA}, s{tA}, s{sIB}")
        for i in range(4):
            A(f"buffer_store_dwordx4 v[40:43], v{vL16}, {srd(SWS)}, s{tA} offen offset:{i*1024} sc1")
        A(f"s_add_u32 s{tA}, s{tA}, 4096")
        for i in range(4):
            A(f"buffer_store_dwordx4 v[40:43], v{vL16}, {srd(SWS)}, s{tA} offen offset:{i*1024} sc1")
    lp1 = e.label("L_p1")
    A(f"s_cmp_ge_u32 s{sI}, 2")
    A(f"s_cbranch_scc1 {lp1}")
    A(f"s_lshl_b32 s{tA}, s{sI}, 10")
    A(f"s_add_u32 s{tA}, s{tA}, s{sIB}")
    A(f"s_add_u32 s{tA}, s{tA}, {CTX_REL}")
    A(f"buffer_store_dwordx4 v[40:43], v{vL16}, {srd(SWS)}, s{tA} offen sc1")
    A(f"{lp1}:")
    lp2 = e.label("L_p2")
    A(f"s_cmp_ge_u32 s{sU}, 56")
    A(f"s_cbranch_scc1 {lp2}")
    A(f"s_lshl_b32 s{tA}, s{sI}, 11")
    A(f"s_add_u32 s{tA}, s{tA}, s{sOB}")
    A(f"buffer_store_dwordx4 v[40:43], v{vL16}, {srd(SWS)}, s{tA} offen sc1")
    A(f"buffer_store_dwordx4 v[40:43], v{vL16}, {srd(SWS)}, s{tA} offen offset:1024 sc1")
    A(f"{lp2}:")
    VC = 36
    for tt in range(4):
        A(f"v_add_u32 v{VC+tt}, {4*tt}, v{vK}")
        A(f"v_xor_b32 v{VC+tt}, v{VC+tt}, v{vN}")
        A(f"v_lshlrev_b32 v{VC+tt}, 4, v{VC+tt}")
        A(f"v_lshl_add_u32 v{VC+tt}, v{vK}, 11, v{VC+tt}")
    WUV = 64; WO = 128
    A(f"v_lshrrev_b32 v17, 1, v{vK}")
    A(f"v_and_b32 v19, 1, v{vK}")
    A("v_xor_b32 v19, v19, v17")
    A(f"v_lshl_add_u32 v19, v19, 15, v{vN16}")
    A("v_lshl_add_u32 v19, v17, 18, v19")
    A(f"s_lshl_b32 s{sA2}, s{sJ}, 7")
    A(f"s_lshl_b32 s{tA}, s{sI}, 3")
    A(f"s_add_u32 s{sA2}, s{sA2}, s{tA}")
    A(f"s_lshl_b32 s{sA2}, s{sA2}, 13")
    A(f"s_add_u32 s{sA2}, s{sA2}, s{sH5}")
    A("v_mov_b32 v17, 1792")
    A(f"v_mad_u32_u24 v17, v{vK}, v17, v{vN16}")
    A(f"s_lshl_b32 s10, s{sU}, 2")
    A(f"s_add_u32 s10, s10, s{sI}")
    A(f"s_mul_i32 s10, s10, {8*896}")
    A(f"v_cmp_gt_u32 s[{sM}:{sM+1}], 8, v{vN}")
    A(f"s_lshl_b32 s{sA1}, s{sB}, 23")
    A(f"s_lshl_b32 s{tA}, s{sKB}, 17")
    A(f"s_add_u32 s{sA1}, s{sA1}, s{tA}")
    A(f"s_lshl_b32 s{tA}, s{sI}, 9")
    A(f"s_add_u32 s{sA1}, s{sA1}, s{tA}")
    A(f"s_lshl_b32 s{sX1}, s{sI}, 15")
    ops = []
    def wuv_op(n):
        q, dh = n >> 1, n & 1
        A(f"s_add_u32 s{tA}, s{sA2}, {(64*(q>>2) + (q&3))*8192}")
        A(f"buffer_load_dwordx4 {vr(WUV+n*4,4)}, v19, {srd(SWUV)}, s{tA} offen offset:{dh*256}{NT}")
    def wo_op(n):
        q, cb = n >> 2, n & 3
        A(f"s_add_u32 s{tA}, s10, {q*896}")
        if cb == 3: A(f"s_mov_b64 exec, s[{sM}:{sM+1}]")
        A(f"buffer_load_dwordx4 {vr(WO+n*4,4)}, v17, {srd(SWO)}, s{tA} offen offset:{cb*256}{NT}")
        if cb == 3: A("s_mov_b64 exec, -1")
    def ck_op(n):
        t, cr = n >> 1, n & 1
        A(f"s_add_u32 s{tA}, s{sX1}, {cr*16384 + t*1024}")
        A(f"s_mov_b32 m0, s{tA}")
        A(f"s_add_u32 s{tB}, s{sA1}, {t*4*2048 + cr*256}")
        A(f"buffer_load_dwordx4 v{VC+(t&3)}, {srd(SCKV)}, s{tB} offen{NT} lds")
    wl = [(wuv_op, n) for n in range(16)] + [(wo_op, n) for n in range(8)]
    seqo = wl[:wpre] + [(ck_op, n) for n in range(32)]
    post = wl[wpre:]
    for k, (f, n) in enumerate(seqo):
        f(n)
        if k == 3:
            A("s_waitcnt vmcnt(4)")
            signal(C_POIS)
    stamp(1)
    npost = min(len(post), 8)
    for f, n in post[:npost]: f(n)
    A(f"s_waitcnt vmcnt({npost})")
    signal(16, areg=28)
    stamp(4)
    for f, n in post[npost:]: f(n)
    A("s_setprio 2")
    IB = 160
    AOPS = 192
    A(f"v_lshl_add_u32 v18, v{vK}, 11, v{vN16}")
    A(f"s_lshl_b32 s{sA2}, s{sI}, 13")
    A(f"s_add_u32 s{sA2}, s{sA2}, s{sIB}")
    A(f"s_lshr_b32 s{sX1}, s{sI}, 1")
    A(f"s_lshl_b32 s{sX1}, s{sX1}, 10")
    A(f"s_add_u32 s{sX1}, s{sX1}, s{sIB}")
    A(f"s_add_u32 s{sX1}, s{sX1}, {STP_REL}")
    A(f"s_lshl_b32 s{tB}, s{sI}, 8")
    A(f"s_add_u32 s{tB}, s{tB}, {AL_L}")
    A(f"v_lshlrev_b32 v20, 2, v{vL}")
    A(f"v_add_u32 v20, s{tB}, v20")
    A(f"s_and_b32 s{tA}, s{sI}, 1")
    A(f"s_lshl_b32 s{tA}, s{tA}, 7")
    A(f"s_add_u32 s{tB}, s{tB}, s{tA}")
    A(f"v_lshlrev_b32 v21, 5, v{vK}")
    A(f"v_add_u32 v21, s{tB}, v21")
    A(f"s_lshl_b32 s{tA}, s{sI}, 10")
    A(f"s_add_u32 s{tA}, s{tA}, {OP_L}")
    dtile_addr(22, 51, 9, tA)
    A(f"v_lshrrev_b32 v23, 3, v{vN}")
    A("v_lshlrev_b32 v23, 11, v23")
    A(f"v_lshl_add_u32 v23, v{vK}, 4, v23")
    A(f"s_lshl_b32 s{tB}, s{sI}, 7")
    A(f"s_add_u32 s{tB}, s{tB}, {OP_L}")
    A(f"v_add_u32 v23, s{tB}, v23")
    A(f"s_lshl_b32 s{tA}, s{sI}, 11")
    A(f"s_add_u32 s{tA}, s{tA}, {CP_L}")
    dtile_addr(24, 51, 10, tA)
    A(f"s_lshl_b32 s{tB}, s{sI}, 9")
    A(f"s_add_u32 s{tB}, s{tB}, {CP_L}")
    A(f"v_add_u32 v25, s{tB}, v{vL16}")
    A(f"v_lshrrev_b32 v26, 3, v{vL}")
    A(f"s_mov_b32 s{tA}, {IB_STRIDE}")
    A(f"v_mul_lo_u32 v26, v26, s{tA}")
    A(f"v_and_b32 v51, 7, v{vL}")
    A("v_lshl_add_u32 v26, v51, 4, v26")
    A(f"s_mul_i32 s64, s{sG}, {8*IB_STRIDE}")
    A(f"s_add_u32 s64, s64, {INBOX_OFF + CTX_REL}")
    A(f"s_lshl_b32 s{tB}, s{sJ}, 8")
    A(f"s_add_u32 s64, s64, s{tB}")
    A(f"s_lshr_b32 s{tB}, s{sI}, 1")
    A(f"s_lshl_b32 s{tB}, s{tB}, 7")
    A(f"s_add_u32 s64, s64, s{tB}")
    A(f"s_and_b32 s{tB}, s{sI}, 1")
    A(f"s_mul_i32 s{tB}, s{tB}, {4*IB_STRIDE}")
    A(f"s_add_u32 s64, s64, s{tB}")
    A(f"v_lshrrev_b32 v27, 3, v{vN}")
    A("v_lshlrev_b32 v27, 7, v27")
    A(f"v_lshl_add_u32 v27, v{vK}, 3, v27")
    A(f"s_lshl_b32 s65, s{sI}, 5")
    A(f"s_add_u32 s65, s65, s{sIB}")
    A(f"s_add_u32 s65, s65, {CTX_REL}")
    A(f"s_lshl_b32 s{tA}, s{sI}, 12")
    dtile_addr(16, 51, 11, tA)
    A("v_subrev_u32 v53, 256, v0")
    A("v_cmp_le_u32 vcc, 112, v53")
    A("s_nop 1")
    A("v_cndmask_b32 v50, 0, 1, vcc")
    A("v_mul_u32_u24 v51, 112, v50")
    A("v_sub_u32 v51, v53, v51")
    A("v_lshlrev_b32 v17, 11, v50")
    A("v_lshl_add_u32 v17, v51, 4, v17")
    A("v_lshrrev_b32 v19, 2, v53")
    A("v_lshlrev_b32 v19, 13, v19")
    A("v_and_b32 v51, 3, v53")
    A("v_lshl_add_u32 v19, v51, 4, v19")
    A(f"s_mul_i32 s66, s{sP}, {56*8192}")
    A(f"s_lshl_b32 s{tB}, s{sU}, 6")
    A(f"s_add_u32 s66, s66, s{tB}")
    A(f"s_add_u32 s66, s66, {OUTB_OFF}")
    A("v_cmp_gt_u32 vcc, 224, v53")
    A("s_mov_b64 s[68:69], vcc")
    A(f"v_cmp_lt_u32 s[70:71], 7, v{vN}")
    A(f"s_lshl_b32 s67, s{sI}, 11")
    A(f"s_add_u32 s67, s67, s{sOB}")
    A(f"s_load_dwordx2 s[{SOUT}:{SOUT+1}], s[0:1], 96")
    A(f"s_mov_b32 s{SOUT+2}, 3584")
    A(f"s_mov_b32 s{SOUT+3}, 0x00020000")
    def st_loads():
        A(f"buffer_load_dwordx3 v[48:50], v{vL16}, {srd(SWS)}, s{sX1} offen sc1")
    def st_check():
        A(f"v_cmp_ne_u32 vcc, s{sTAG}, v50")
        A("s_nop 1")
        A("s_cmp_eq_u64 vcc, 0")
    if stamps:
        A("s_waitcnt vmcnt(0)")
        stamp(3)
    wait_cnt(C_F3, 4, sleep=2)
    stamp(5)
    st_loads()
    A("s_waitcnt vmcnt(0)")
    poll("st", st_check, st_loads, sleep=st_sleep)
    stamp(6)
    for q in range(8):
        A(f"buffer_load_dwordx4 {vr(IB+4*q,4)}, v18, {srd(SWS)}, s{sA2} offen offset:{q*256} sc1")
    def wave_reduce(op, r, t):
        for dpp in ("quad_perm:[1,0,3,2]", "quad_perm:[2,3,0,1]", "row_half_mirror", "row_mirror"):
            A("s_nop 1")
            A(f"{op}_dpp v{r}, v{r}, v{r} {dpp} row_mask:0xf bank_mask:0xf")
        A(f"v_mov_b32 v{t}, v{r}"); A("s_nop 1"); A(f"v_permlane16_swap_b32 v{r}, v{t}"); A(f"{op} v{r}, v{r}, v{t}")
        A(f"v_mov_b32 v{t}, v{r}"); A("s_nop 1"); A(f"v_permlane32_swap_b32 v{r}, v{t}"); A(f"{op} v{r}, v{r}, v{t}")
    A("v_mov_b32 v50, v48")
    wave_reduce("v_max_f32", 50, 51)
    A("v_sub_f32 v48, v48, v50")
    A("v_exp_f32 v48, v48")
    A("s_nop 0")
    A("v_mul_f32 v49, v49, v48")
    wave_reduce("v_add_f32", 49, 51)
    A("v_rcp_f32 v49, v49")
    A("s_nop 0")
    A("v_mul_f32 v48, v48, v49")
    A("ds_write_b32 v20, v48")
    A("s_waitcnt lgkmcnt(0)")
    A("ds_read_b128 v[40:43], v21")
    A("ds_read_b128 v[44:47], v21 offset:16")
    A("s_waitcnt lgkmcnt(0)")
    for q in range(4):
        A(f"v_cvt_pk_bf16_f32 v{52+q}, v{40+2*q}, v{41+2*q}")
    for q in range(4):
        A(f"v_lshlrev_b32 v60, 16, v{52+q}"); A(f"v_and_b32 v61, 0xffff0000, v{52+q}")
        A(f"v_sub_f32 v{40+2*q}, v{40+2*q}, v60"); A(f"v_sub_f32 v{41+2*q}, v{41+2*q}, v61")
        A(f"v_cvt_pk_bf16_f32 v{56+q}, v{40+2*q}, v{41+2*q}")
    for q in range(4):
        A(f"v_cndmask_b32 v{52+q}, v{52+q}, v{56+q}, s[70:71]")
    for q in range(8): build_A(AOPS + 4*q, 52 + (q >> 1), q & 1)
    for q in range(8):
        A(f"s_waitcnt vmcnt({7-q})")
        c = "0" if q < 2 else vr(40+4*(q&1), 4)
        A(f"v_mfma_f32_16x16x32_bf16 {vr(40+4*(q&1),4)}, {vr(AOPS+4*q,4)}, {vr(IB+4*q,4)}, {c}")
    stamp(7)
    A("s_nop 7")
    A("v_pk_add_f32 v[40:41], v[40:41], v[44:45]")
    A("v_pk_add_f32 v[42:43], v[42:43], v[46:47]")
    A("ds_write_b128 v22, v[40:43]")
    A("s_waitcnt lgkmcnt(0)")
    A("s_barrier")
    for hh in range(2):
        for q in range(4):
            A(f"ds_read_b128 {vr(160+hh*16+4*q,4)}, v23 offset:{q*512+hh*64}")
    A("s_waitcnt lgkmcnt(4)")
    tree_sum4(160, 4)
    A("v_cvt_pk_bf16_f32 v52, v160, v161"); A("v_cvt_pk_bf16_f32 v53, v162, v163")
    A("s_waitcnt lgkmcnt(0)")
    tree_sum4(176, 4)
    A("v_cvt_pk_bf16_f32 v54, v176, v177"); A("v_cvt_pk_bf16_f32 v55, v178, v179")
    build_A(AOPS, 52, 0)
    for q in range(8):
        if q < 7: build_A(AOPS + 4*(q+1), 52 + ((q+1) >> 1), (q+1) & 1)
        else: A("s_nop 1")
        for dh in range(2):
            c = "0" if q == 0 else vr(40+4*dh, 4)
            A(f"v_mfma_f32_16x16x32_bf16 {vr(40+4*dh,4)}, {vr(AOPS+4*q,4)}, {vr(WUV+(2*q+dh)*4,4)}, {c}")
    A("s_nop 7")
    A("ds_write_b128 v24, v[40:43]")
    A("ds_write_b128 v24, v[44:47] offset:512")
    A("s_waitcnt lgkmcnt(0)")
    A("s_barrier")
    A("s_mov_b32 exec_hi, 0")
    for w2 in range(4):
        A(f"ds_read_b128 {vr(160+4*w2,4)}, v25 offset:{w2*2048}")
    A("s_waitcnt lgkmcnt(0)")
    tree_sum4(160, 4)
    A(f"buffer_store_dwordx4 v[160:163], v26, {srd(SWS)}, s64 offen sc1")
    A("s_mov_b64 exec, -1")
    stamp(8)
    def cx_loads():
        for s in range(8):
            A(f"buffer_load_dwordx2 {vr(176+2*s,2)}, v27, {srd(SWS)}, s65 offen offset:{s*256} sc1")
    if cx_delay: A(f"s_sleep {cx_delay}")
    cx_loads()
    A("s_waitcnt vmcnt(0)")
    poll("cx", poison_check(range(176, 192), 50), cx_loads, sleep=cx_sleep)
    stamp(9)
    for st in (1, 2, 4):
        for s in range(0, 8, 2*st):
            A(f"v_pk_add_f32 {vr(176+2*s,2)}, {vr(176+2*s,2)}, {vr(176+2*(s+st),2)}")
    A("v_cvt_pk_bf16_f32 v52, v176, v177")
    build_A(AOPS, 52, 0); build_A(AOPS+4, 52, 1)
    OC = 224
    for q in range(2):
        for cb in range(4):
            c = "0" if q == 0 else vr(OC+4*cb, 4)
            A(f"v_mfma_f32_16x16x32_bf16 {vr(OC+4*cb,4)}, {vr(AOPS+4*q,4)}, {vr(WO+(4*q+cb)*4,4)}, {c}")
    A("s_nop 4")
    for cb in range(4):
        A(f"ds_write_b128 v16, {vr(OC+4*cb,4)} offset:{OPP_L+cb*512}")
    A("s_waitcnt lgkmcnt(0)")
    A("s_barrier")
    A("s_mov_b64 exec, s[68:69]")
    for w2 in range(4):
        A(f"ds_read_b128 {vr(160+4*w2,4)}, v17 offset:{OPP_L+w2*4096}")
    A("s_waitcnt lgkmcnt(0)")
    tree_sum4(160, 4)
    A(f"buffer_store_dwordx4 v[160:163], v19, {srd(SWS)}, s66 offen sc1")
    A("s_mov_b64 exec, -1")
    stamp(10)
    A(f"s_cmp_ge_u32 s{sU}, 56")
    A("s_cbranch_scc1 L_fin")
    def ob_loads():
        for i in range(2):
            A(f"buffer_load_dwordx4 {vr(32+4*i,4)}, v{vL16}, {srd(SWS)}, s67 offen offset:{i*1024} sc1")
    if ob_delay: A(f"s_sleep {ob_delay}")
    ob_loads()
    A("s_waitcnt vmcnt(0)")
    poll("ob", poison_check(range(32, 40), 64), ob_loads, sleep=ob_sleep)
    tree_sum4(32, 2)
    for rot in (4, 8):
        A("s_nop 1")
        for r in range(32, 36):
            A(f"v_add_f32_dpp v{r}, v{r}, v{r} row_ror:{rot} row_mask:0xf bank_mask:0xf")
    FIN_L = 20480
    A(f"s_lshl_b32 s{tA}, s{sI}, 8")
    A(f"v_lshlrev_b32 v40, 6, v{vK}")
    A(f"v_add_u32 v40, v40, v{vN16}")
    A(f"v_add_u32 v40, s{tA}, v40")
    A(f"v_cmp_gt_u32 vcc, 4, v{vN}")
    A(f"s_and_saveexec_b64 s[{sEX}:{sEX+1}], vcc")
    A(f"ds_write_b128 v40, v[32:35] offset:{FIN_L}")
    A("s_mov_b64 exec, -1")
    A("s_waitcnt lgkmcnt(0)")
    A("s_barrier")
    A(f"s_cmp_lg_u32 s{sI}, 0")
    A("s_cbranch_scc1 L_fin")
    A(f"ds_read_b128 v[32:35], v{vL16} offset:{FIN_L}")
    A("s_waitcnt lgkmcnt(0)")
    for rot in (4, 8):
        A("s_nop 1")
        for r in range(32, 36):
            A(f"v_add_f32_dpp v{r}, v{r}, v{r} row_ror:{rot} row_mask:0xf bank_mask:0xf")
    for r in range(32, 36):
        A(f"v_mov_b32 v{r+8}, v{r}")
    A("s_nop 1")
    for r in range(32, 36):
        A(f"v_permlane16_swap_b32 v{r}, v{r+8}")
    for r in range(32, 36):
        A(f"v_add_f32 v{r}, v{r}, v{r+8}")
    for r in range(32, 36):
        A(f"v_mov_b32 v{r+8}, v{r}")
    A("s_nop 1")
    for r in range(32, 36):
        A(f"v_permlane32_swap_b32 v{r}, v{r+8}")
    for r in range(32, 36):
        A(f"v_add_f32 v{r}, v{r}, v{r+8}")
    A("v_cvt_pk_bf16_f32 v36, v32, v33")
    A("v_cvt_pk_bf16_f32 v37, v34, v35")
    A(f"s_cmp_ge_u32 s{sU}, 28")
    A(f"s_cselect_b32 s{tA}, 896, 0")
    A(f"s_mul_i32 s{tB}, s{sP}, 896")
    A(f"s_add_u32 s{tA}, s{tA}, s{tB}")
    A(f"s_lshl_b32 s{tB}, s{sU}, 5")
    A(f"s_add_u32 s{tA}, s{tA}, s{tB}")
    A(f"v_lshlrev_b32 v40, 3, v{vL}")
    A("s_mov_b64 exec, 15")
    A(f"buffer_store_dwordx2 v[36:37], v40, {srd(SOUT)}, s{tA} offen")
    A("s_mov_b64 exec, -1")
    A(f"s_cmp_lg_u32 s{sU}, 0")
    A("s_cbranch_scc1 L_fin")
    A(f"s_lshl_b32 s{tA}, s{sP}, 8")
    A(f"s_add_u32 s{tA}, s{tA}, {EPOCH_OFF}")
    A(f"v_mov_b32 v40, s{sTAG}")
    A("v_mov_b32 v41, 0")
    A("s_mov_b64 exec, 1")
    A(f"buffer_store_dword v40, v41, {srd(SWS)}, s{tA} offen sc1")
    A("s_mov_b64 exec, -1")
    A("L_fin:")
    stamp(11)
    if stamps:
        A(f"s_lshl_b32 s{tA}, s2, 3")
        A(f"s_add_u32 s{tA}, s{tA}, s{sW}")
        A(f"s_lshl_b32 s{tA}, s{tA}, 6")
        A(f"s_add_u32 s{tA}, s{tA}, {STAMP_OFF}")
        A("s_waitcnt lgkmcnt(0)")
        for i in range(3): A(f"ds_read_b128 {vr(32+4*i,4)}, v{vSTA} offset:{16*i}")
        A("s_waitcnt lgkmcnt(0)")
        A(f"v_mov_b32 v32, s{sST0}")
        A("v_mov_b32 v44, 0")
        A("s_mov_b64 exec, 1")
        for i in range(3):
            A(f"buffer_store_dwordx4 {vr(32+4*i,4)}, v44, {srd(SWS)}, s{tA} offen offset:{16*i}")
        A("s_mov_b64 exec, -1")
        if dbgid >= 0:
            A(f"s_cmp_lg_u32 s2, {dbgid}")
            A("s_cbranch_scc1 L_end")
            A(f"s_cmp_lg_u32 s{sI}, 0")
            A("s_cbranch_scc1 L_end")
            A("s_load_dwordx2 s[40:41], s[0:1], 104")
            A("s_mov_b32 s42, 256")
            A("s_mov_b32 s43, 0x00020000")
            A("s_waitcnt lgkmcnt(0)")
            lg = e.label("L_dg1")
            A(f"s_cmp_ge_u32 s{sW}, 4")
            A(f"s_cbranch_scc1 {lg}")
            for k, idx in enumerate((2, 3, 5, 4, 9, 10, 11, 7)):
                A(f"v_sub_u32 v{48+k}, v{32+idx}, v32")
            A("s_mov_b64 exec, 1")
            A("buffer_store_dwordx4 v[48:51], v44, s[40:43], 0 offen")
            A("buffer_store_dwordx4 v[52:55], v44, s[40:43], 0 offen offset:16")
            A("s_branch L_end")
            A(f"{lg}:")
            for k, idx in enumerate((2, 1, 4, 6, 7, 8, 9, 10)):
                A(f"v_sub_u32 v{48+k}, v{32+idx}, v32")
            A("s_mov_b64 exec, 1")
            A("buffer_store_dwordx4 v[48:51], v44, s[40:43], 0 offen offset:32")
            A("buffer_store_dwordx4 v[52:55], v44, s[40:43], 0 offen offset:48")
    A("L_end:")
    A("L_codeend:")
    return e.text()

if __name__ == "__main__":
    import argparse
    ap = argparse.ArgumentParser()
    ap.add_argument("-o", default="k9.s")
    ap.add_argument("--stamps", action="store_true")
    ap.add_argument("--nt", action="store_true")
    ap.add_argument("--f2_sleep", type=int, default=2)
    ap.add_argument("--st_sleep", type=int, default=2)
    ap.add_argument("--dbgid", type=int, default=-1)
    ap.add_argument("--wpre", type=int, default=0)
    ap.add_argument("--cx_delay", type=int, default=0)
    ap.add_argument("--ob_delay", type=int, default=0)
    ap.add_argument("--cx_sleep", type=int, default=0)
    ap.add_argument("--ob_sleep", type=int, default=0)
    ap.add_argument("--qv_sleep", type=int, default=1)
    ap.add_argument("--swapb", type=int, default=1)
    ap.add_argument("--s1x", type=int, default=0)
    ap.add_argument("--rowst", type=int, default=1)
    ap.add_argument("--prew", type=int, default=0)
    ap.add_argument("--qtag", type=int, default=1)
    ap.add_argument("--cpf", type=int, default=0)
    a = ap.parse_args()
    body = gen(stamps=a.stamps, nt=a.nt, f2_sleep=a.f2_sleep, st_sleep=a.st_sleep, dbgid=a.dbgid, wpre=a.wpre, cpf=a.cpf, cx_delay=a.cx_delay, ob_delay=a.ob_delay, cx_sleep=a.cx_sleep, ob_sleep=a.ob_sleep, qv_sleep=a.qv_sleep, swapb=a.swapb, s1x=a.s1x, rowst=a.rowst, prew=a.prew, qtag=a.qtag)
    open(a.o, "w").write(single(body, 256, 512, 163840, 256, 102, 256))
```
